```python
import torch

def _softmax(x, axis=-1):
    return torch.softmax(x, dim=axis)
def _gelu(x):
    return torch.nn.functional.gelu(x, approximate="tanh")
def _silu(x):
    return torch.nn.functional.silu(x)
def _sigmoid(x):
    return torch.sigmoid(x)
def _layernorm(x, axis=-1, eps=1e-5):
    m = x.mean(dim=axis, keepdim=True)
    v = x.var(dim=axis, keepdim=True, unbiased=False)
    return (x - m) / torch.sqrt(v + eps)
def _scatter_add(tgt, idx, src, axis=0):
    return tgt.clone().index_add_(axis, idx, src)
def _segment_sum(src, seg, n):
    out = torch.zeros((n,) + src.shape[1:], dtype=src.dtype)
    return out.index_add_(0, seg, src)
def _pad(x, pw):
    flat = tuple(v for pair in reversed(pw) for v in pair)
    return torch.nn.functional.pad(x, flat)

kernel_name = 'concat_heads__mha_block_cached__gqa_block_cached__near_ridge'

def setup_inputs():

    _w = (lambda a: (lambda t: t.to(torch.bfloat16) if t.is_floating_point() else t)(torch.as_tensor(a)))
    def _A_setup():
        B, Sq, D = 16, 240, 448
        H, Sk, Dh = 16, 512, 256
        return {
            "x": _w((lambda *s: torch.randn(*s, dtype=torch.bfloat16) * 0.8)(B, Sq, D)),
            "k_cache": _w((lambda *s: torch.randn(*s, dtype=torch.bfloat16) * 0.8)(B, H, Sk, Dh)),
            "v_cache": _w((lambda *s: torch.randn(*s, dtype=torch.bfloat16) * 0.05)(B, H, Sk, Dh)),
            "wq": _w((lambda *s: torch.randn(*s, dtype=torch.bfloat16) * 0.8)(D, H * Dh) * (D ** -0.5)),
            "wo": _w((lambda *s: torch.randn(*s, dtype=torch.bfloat16) * 0.05)(H * Dh, D) * ((H * Dh) ** -0.5)),
        }
    _A_in = _A_setup()

    def _B_setup():
        B, Sq, D = 16, 240, 448
        Hq, Hkv, Sk, Dh = 16, 16, 512, 256
        assert Hq % Hkv == 0, (Hq, Hkv)
        return {
            "x": _w((lambda *s: torch.randn(*s, dtype=torch.bfloat16) * 0.8)(B, Sq, D)),
            "k_cache": _w((lambda *s: torch.randn(*s, dtype=torch.bfloat16) * 0.8)(B, Hkv, Sk, Dh)),
            "v_cache": _w((lambda *s: torch.randn(*s, dtype=torch.bfloat16) * 0.05)(B, Hkv, Sk, Dh)),
            "wq": _w((lambda *s: torch.randn(*s, dtype=torch.bfloat16) * 0.8)(D, Hq * Dh) * (D ** -0.5)),
            "wo": _w((lambda *s: torch.randn(*s, dtype=torch.bfloat16) * 0.05)(Hq * Dh, D) * ((Hq * Dh) ** -0.5)),
        }
    _B_in = _B_setup()

    return {
        "A_x": _A_in["x"],
        "A_k_cache": _A_in["k_cache"],
        "A_v_cache": _A_in["v_cache"],
        "A_wq": _A_in["wq"],
        "A_wo": _A_in["wo"],
        "B_x": _B_in["x"],
        "B_k_cache": _B_in["k_cache"],
        "B_v_cache": _B_in["v_cache"],
        "B_wq": _B_in["wq"],
        "B_wo": _B_in["wo"],
    }

def reference(A_x, A_k_cache, A_v_cache, A_wq, A_wo, B_x, B_k_cache, B_v_cache, B_wq, B_wo):
    def _A_ref(x, k_cache, v_cache, wq, wo):
        B, Sq, D = x.shape
        H, Dh = 16, 256
        q = (lambda x, *d: x.permute(*d))((x @ wq).reshape(B, Sq, H, Dh), 0, 2, 1, 3)
        scores = torch.einsum("bhqd,bhkd->bhqk", q, k_cache) * (Dh ** -0.5)
        p = _softmax(scores, axis=-1)
        o = torch.einsum("bhqk,bhkd->bhqd", p, v_cache)
        return (lambda x, *d: x.permute(*d))(o, 0, 2, 1, 3).reshape(B, Sq, H * Dh) @ wo

    def _B_ref(x, k_cache, v_cache, wq, wo):
        B, Sq, D = x.shape
        Hq, Dh = 16, 256
        Hkv = k_cache.shape[1]
        rep = Hq // Hkv
        q = (lambda x, *d: x.permute(*d))((x @ wq).reshape(B, Sq, Hq, Dh), 0, 2, 1, 3)
        k = (lambda x, n, axis: torch.repeat_interleave(x, n, dim=axis))(k_cache, rep, axis=1)
        v = (lambda x, n, axis: torch.repeat_interleave(x, n, dim=axis))(v_cache, rep, axis=1)
        scores = torch.einsum("bhqd,bhkd->bhqk", q, k) * (Dh ** -0.5)
        p = _softmax(scores, axis=-1)
        o = torch.einsum("bhqk,bhkd->bhqd", p, v)
        return (lambda x, *d: x.permute(*d))(o, 0, 2, 1, 3).reshape(B, Sq, Hq * Dh) @ wo

    a = _A_ref(A_x, A_k_cache, A_v_cache, A_wq, A_wo)
    b = _B_ref(B_x, B_k_cache, B_v_cache, B_wq, B_wo)
    return torch.concatenate([a, b], axis=-1)
```

```python
import re

REG_RE = re.compile(r"^(-?)(?:abs\()?([vas])(?:(\d+)|\[(\d+):(\d+)\])\)?$")
TRANS = ("v_exp_f32", "v_rcp_f32", "v_log_f32", "v_rsq_f32", "v_sqrt_f32")


def regs_of(op):
    op = op.strip()
    if op in ("vcc", "m0", "exec", "scc"):
        return {op}
    m = REG_RE.match(op)
    if not m:
        return set()
    c = m.group(2)
    if m.group(3) is not None:
        return {(c, int(m.group(3)))}
    return {(c, i) for i in range(int(m.group(4)), int(m.group(5)) + 1)}


class I:
    def __init__(self, text, tag=None, need=None):
        self.text = text
        self.tag = tag
        self.need = need
        self.vmn = None
        self.pre_nop = 0
        self.parse()

    def parse(self):
        t = self.text.split(";")[0].strip()
        self.rd = set(); self.wr = set(); self.A = set(); self.C = set(); self.data = set()
        self.trans = False
        if t.endswith(":"):
            self.kind = "L"; self.mn = "label"; return
        if t.startswith("."):
            self.kind = "L"; self.mn = "dir"; return
        parts = t.split(None, 1)
        mn = parts[0]
        self.mn = mn
        rest = parts[1] if len(parts) > 1 else ""
        ops = [o.strip() for o in rest.split(",")]
        if ops:
            last = ops[-1].split()
            mods = last[1:]
            ops[-1] = last[0] if last else ""
        R = [regs_of(o) for o in ops]
        if mn.startswith("v_mfma"):
            self.kind = "M"
            self.wr = R[0]; self.A = R[1] | R[2]; self.C = R[3]; self.rd = self.A | self.C
        elif mn.startswith("v_permlane"):
            self.kind = "P"; self.wr = R[0] | R[1]; self.rd = R[0] | R[1]
        elif mn.startswith("v_"):
            self.trans = mn.replace("_e32", "").replace("_e64", "") in TRANS
            self.kind = "E" if self.trans else "V"
            self.wr = set(R[0])
            for r in R[1:]: self.rd |= r
            if mn.startswith("v_fmac") or mn.startswith("v_writelane"):
                self.rd |= R[0]
        elif mn.startswith("ds_read"):
            self.kind = "T"; self.wr = R[0]; self.rd = R[1]
        elif mn.startswith("ds_write"):
            self.kind = "T"
            for r in R: self.rd |= r
        elif mn.startswith("buffer_load") or mn.startswith("global_load"):
            if "lds" in mods:
                self.kind = "D"
                for r in R: self.rd |= r
                self.rd.add("m0")
            else:
                self.kind = "G"; self.wr = R[0]
                for r in R[1:]: self.rd |= r
        elif mn.startswith("buffer_store") or mn.startswith("buffer_atomic") or mn.startswith("global_store") or mn.startswith("global_atomic"):
            self.kind = "O"
            for r in R: self.rd |= r
            self.data = R[0] if mn.startswith("buffer") else R[1]
            if "atomic" in mn and "sc0" in mods:
                self.wr = R[0]
        elif mn.startswith("buffer_"):
            self.kind = "O"
        elif mn == "s_waitcnt":
            self.kind = "W"
        elif mn == "s_barrier":
            self.kind = "B"
        elif mn == "s_nop":
            self.kind = "N"; self.n = int(ops[0]) + 1
        elif mn.startswith("s_cbranch") or mn in ("s_branch", "s_endpgm", "s_setpc_b64", "s_swappc_b64"):
            self.kind = "J"
        elif mn.startswith("s_"):
            self.kind = "S"
            if mn.startswith("s_cmp"):
                for r in R: self.rd |= r
            elif R:
                self.wr = set(R[0])
                for r in R[1:]: self.rd |= r
        else:
            raise ValueError("cannot parse " + t)

    def is_valu(self):
        return self.kind in "VEP"

    def is_vmem(self):
        return self.kind in "DGO"

    def out(self):
        s = self.text
        if self.need is not None:
            s = s.format(n=self.vmn)
        pre = ""
        n = self.pre_nop
        while n > 0:
            k = min(n, 16)
            pre += f"s_nop {k-1}\n"
            n -= k
        return pre + s


def waitvm(*tags, lgkm=False):
    return I("s_waitcnt vmcnt({n})" + (" lgkmcnt(0)" if lgkm else ""), need=list(tags))


class Item:
    def __init__(self, ins, after, by, dep, prio, lag):
        self.ins = ins; self.after = after; self.by = by; self.dep = dep or []; self.prio = prio
        self.lag = lag
        self.placed = None


def gap_time(seq):
    t = 4
    lastv = False
    for x in seq:
        k = x.kind
        if k in "SWBN":
            t += 4; lastv = False
        elif k == "T":
            t += 12 if lastv else 8; lastv = False
        elif k == "V":
            t = max(t, 8) + 4; lastv = True
        elif k in "EP":
            t = max(t, 8) + 8; lastv = True
        elif k in "DG":
            t = max(t, 8) + 8; lastv = False
        elif k == "O":
            t = max(t, 8) + 20; lastv = False
        elif k == "J":
            t += 14; lastv = False
        elif k == "L":
            pass
    return t


class Seg:
    def __init__(self, name):
        self.name = name
        self.pre = []
        self.ms = []
        self.streams = {}
        self.post = []
        self.code = None
        self.cycles = 0

    def m(self, text):
        self.ms.append(I(text))
        return len(self.ms) - 1

    def add(self, stream, ins, after=0, by=None, dep=None, prio=0, lag=0):
        if isinstance(ins, str):
            ins = I(ins)
        st = self.streams.get(stream)
        if st and dep is None:
            pv = st[-1].ins
            if (ins.kind == "D" and "m0" in pv.wr) or (pv.trans and pv.wr & ins.rd):
                dep = [st[-1]]; lag = 1
            elif ins.kind == "P" and pv.wr & ins.rd:
                dep = [st[-1]]; lag = 2
        it = Item(ins, after, by, dep, prio, lag)
        self.streams.setdefault(stream, []).append(it)
        return it

    def raw(self, *ins):
        for x in ins:
            for line in (x.split("\n") if isinstance(x, str) else [x]):
                if isinstance(line, str):
                    if not line.strip():
                        continue
                    line = I(line.strip())
                (self.post if self.ms else self.pre).append(line)

    def schedule(self):
        n = len(self.ms)
        code = list(self.pre)
        for _ in range(3):
            for s in self.streams.values():
                nxt = n - 1
                for it in reversed(s):
                    b = n - 1 if it.by is None else it.by
                    it.by = min(b, nxt)
                    nxt = it.by
                    for d in it.dep:
                        d.by = min(n - 1 if d.by is None else d.by, max(0, it.by - it.lag))
        pos = {k: 0 for k in self.streams}
        over = 0
        for g in range(n):
            code.append(self.ms[g])
            chosen = []
            while True:
                cands = []
                for k, s in self.streams.items():
                    if pos[k] < len(s):
                        it = s[pos[k]]
                        if all(d.placed is not None and (d.placed + it.lag <= g or it.by <= g) for d in it.dep) and (it.after <= g or it.by <= g):
                            cands.append((it.by > g, -it.prio, it.by, k, it))
                cands.sort(key=lambda c: c[:3])
                done = False
                for notforced, _, _, k, it in cands:
                    best = None
                    lo = 0
                    for idx, c in enumerate(chosen):
                        if c.stream == k or c in it.dep:
                            lo = idx + 1
                    for p in range(lo, len(chosen) + 1):
                        trial = chosen[:p] + [it] + chosen[p:]
                        t = gap_time([c.ins for c in trial])
                        if best is None or t < best[0]:
                            best = (t, p)
                    lone_ok = it.ins.kind in "OJ" and all(c.ins.kind in "SWB" for c in chosen) and len(chosen) <= (1 if it.ins.kind == "O" else 0)
                    if best[0] <= 16 or not notforced or lone_ok:
                        it.stream = k
                        it.placed = g
                        chosen.insert(best[1], it)
                        pos[k] += 1
                        done = True
                        break
                if not done:
                    break
            t = gap_time([c.ins for c in chosen])
            over += max(0, t - 16)
            code.extend(c.ins for c in chosen)
        for k, s in self.streams.items():
            assert pos[k] == len(s), (self.name, k, pos[k], len(s))
        code.extend(self.post)
        extra = gap_time([x for x in self.pre if x.kind != "M"]) + gap_time([x for x in self.post if x.kind != "M"]) - 8
        self.over = over
        self.extra = extra
        self.cycles = 16 * n + over + extra
        self.code = code
        return code


def resolve_vmcnt(trace):
    issued = []
    def res(tag, J):
        return (tag[0], None if tag[1] is None else tag[1] + J)
    for seg, J in trace:
        for x in seg.code:
            if x.is_vmem() and not x.mn.startswith("buffer_wbl2") and not x.mn.startswith("buffer_inv"):
                issued.append(res(x.tag, J) if x.tag else None)
            elif x.need is not None:
                n = 63
                for tg in x.need:
                    r = res(tg, J)
                    idx = [i for i, t in enumerate(issued) if t == r]
                    if not idx:
                        raise ValueError(f"wait for never-issued tag {r} in {seg.name}")
                    n = min(n, len(issued) - 1 - idx[-1])
                x.vmn = n if x.vmn is None else min(x.vmn, n)


def check_hazards(trace, verbose=True):
    lin = []
    for seg, J in trace:
        lin.extend((x, seg) for x in seg.code if x.kind != "L")
    fixes = 0
    for i, (c, seg) in enumerate(lin):
        need = 0
        dist = c.pre_nop
        why = None
        j = i - 1
        while j >= 0 and dist < 12:
            p = lin[j][0]
            req = 0
            if p.kind == "M":
                if c.kind == "M":
                    if p.wr & c.A: req = 8
                    elif p.wr & c.C and p.wr != c.C: req = 6
                    elif p.wr & c.wr and not (p.wr & c.C): req = 8
                elif (c.is_valu() or c.is_vmem() or c.kind == "T") and (p.wr & (c.rd | c.wr)): req = 8
                if c.is_valu() and (p.C & c.wr): req = max(req, 3)
            elif p.is_valu():
                vw = {r for r in p.wr if r[0] in "va" and r != "vcc"}
                sw = p.wr - vw
                if c.kind == "M" and vw & c.rd: req = 2
                if c.kind == "P" and vw & c.rd: req = 2
                if p.trans and c.is_valu() and vw & c.rd: req = max(req, 1)
                if c.mn.startswith("v_readfirstlane") or c.mn.startswith("v_readlane"):
                    if vw & c.rd: req = max(req, 1)
                if c.is_vmem() and sw & c.rd: req = 5
                if c.is_valu() and sw & c.rd: req = max(req, 2)
                if c.kind == "S" and sw & c.rd: req = max(req, 2)
            elif p.kind == "S":
                if "m0" in p.wr and c.kind == "D": req = 1
            elif p.kind == "O":
                if p.data & c.wr: req = 2
            if req - dist > need:
                need = req - dist; why = p
            dist += (p.n if p.kind == "N" else 1) + p.pre_nop
            j -= 1
        if need > 0:
            c.pre_nop += need
            fixes += 1
            if verbose:
                print(f"  hazard in {seg.name}: +{need} nop before [{c.text}] after [{why.text}]")
    return fixes
```

```python
import sys, math, struct
from asmlib import *

NAME = "concat_heads__mha_block_cached__gqa_block_cached__near_ridge"
MF = "v_mfma_f32_16x16x32_bf16"

def f32hex(x):
    return "0x%08x" % struct.unpack("<I", struct.pack("<f", x))[0]

def v4(n): return f"v[{n}:{n+3}]"
def a4(n): return f"a[{n}:{n+3}]"
def half(reg, n):
    c = reg[0]; b = int(reg[2:].split(":")[0]) + 2 * n
    return f"{c}[{b}:{b+1}]"
def el(reg, n):
    c = reg[0]; b = int(reg[2:].split(":")[0]) + n
    return f"{c}{b}"

SRD_X, SRD_WQ, SRD_K, SRD_V, SRD_WO, SRD_SP, SRD_P = (f"s[{n}:{n+3}]" for n in (4, 8, 12, 16, 20, 24, 28))
sW, sW4K, sKoff, sVoff, sThr, sScale, sTmp, sSoff, sP, sCnt, sHead, sSp, sWqOff, sWoOff, sW7K, sLd, sTmp2 = (f"s{n}" for n in range(32, 49))
sXq = ["0", "s50", "s51", "s52"]
vLin, vDkv, vDwq, vDwo = "v1", "v2", "v3", "v4"
vKa = ["v5", "v6"]
vVa = ["v7", "v8", "v9", "v10"]
vWqA = [["v11", "v12"], ["v13", "v14"]]
vL1 = ["v11", "v12", "v13", "v14"]
vWoA = [["v15", "v16"], ["v17", "v18"], ["v19", "v20"]]
vT = ["v0", "v21", "v22", "v23"]
vL = [f"v{24+t}" for t in range(4)]
vTS = [f"v{28+t}" for t in range(4)]
NEGM = [v4(32 + 4 * t) for t in range(4)]
XY = [[v4(48 + 4 * t) for t in range(4)], [v4(64 + 4 * t) for t in range(4)]]
Z = [v4(80 + 4 * t) for t in range(4)]
ACC = [[v4(32 + 16 * d + 4 * t) for t in range(4)] for d in range(4)]
def Oreg(dt, t): return v4(96 + 16 * dt + 4 * t) if dt < 10 else a4(160 + 16 * (dt - 10) + 4 * t)
def Qreg(ks, t): return a4(16 * ks + 4 * t)
F = [[a4(128 + 4 * i) for i in range(4)], [a4(144 + 4 * i) for i in range(4)]]
FQ = [[v4(96 + 4 * i) for i in range(7)], [v4(124 + 4 * i) for i in range(7)]]
def Xreg(ks, t):
    f = ks * 4 + t
    return a4(128 + 4 * f) if f < 32 else v4(160 + 4 * (f - 32))
def O2reg(ks, t): return Oreg(2 * ks, t) if ks < 5 else Oreg(2 * (ks - 5) + 1, t)

WQ_SLOT = [131072, 65536, 98304]
WO_SLOT = [131072, 0, 32768, 65536, 98304]
DBORDER = [4, 5, 6, 7, 0, 1, 2, 3]
WS_SPILL = 64 << 20


class Gen:
    def __init__(self, nq, sfx, opt):
        self.nq = nq; self.sfx = sfx; self.opt = opt
        self.slow = []

    def L(self, s): return f"L{s}_{self.sfx}"

    def dma_wq(self, s, n):
        db = DBORDER[s >> 1]; hf = s & 1
        return [I(f"s_add_u32 m0, {sW7K}, {WQ_SLOT[s % 3] + n * 1024}"),
                I(f"s_add_u32 {sSoff}, {sWqOff}, {(hf * 224 + n * 8) * 8192 + db * 128}"),
                I(f"buffer_load_dwordx4 {vDwq}, {SRD_WQ}, {sSoff} offen lds", tag=(f"wq{s}", None))]

    def dma_wo(self, u, n):
        cb = u >> 1; hh = u & 1
        kb = (n & 3) + 16 * (n >> 2)
        return [I(f"s_add_u32 m0, {sW4K}, {WO_SLOT[u % 5] + kb * 1024}"),
                I(f"s_add_u32 {sSoff}, {sWoOff}, {(hh * 256 + kb * 8) * 896 + cb * 128}"),
                I(f"buffer_load_dwordx4 {vDwo}, {SRD_WO}, {sSoff} offen lds", tag=(f"wo{u}", None))]

    def dma_kv(self, which, slot, cb, soff, tag):
        base = 0 if which == "K" else 65536
        srd = SRD_K if which == "K" else SRD_V
        nt = " nt" if self.opt.get("nt") else ""
        return [I(f"s_add_u32 m0, {sW4K}, {base + slot * 16384 + cb * 896}"),
                I(f"buffer_load_dwordx4 {vDkv}, {srd}, {soff} offen offset:{cb * 128}{nt} lds", tag=tag)]

    def rd_k(self, slot, kt, h, p):
        return [f"ds_read_b128 {F[p][i]}, {vKa[i & 1]} offset:{slot * 16384 + kt * 8192 + ((4 * h + i) >> 1) * 1024}" for i in range(4)]

    def rd_v(self, slot, grp, p):
        return [f"ds_read_b64_tr_b16 {half(F[p][i], n)}, {vVa[i]} offset:{slot * 16384 + n * 8192 + grp * 1024}"
                for i in range(4) for n in range(2)]

    def rd_wq(self, s, dt, p):
        so = WQ_SLOT[s % 3]
        bi, off = (1, so - 131072) if so >= 131072 else (0, so - 65536)
        return [f"ds_read_b64_tr_b16 {half(FQ[p][i], n)}, {vWqA[bi][dt >> 1]} offset:{off + i * 4096 + n * 512 + (dt & 1) * 8}"
                for i in range(7) for n in range(2)]

    def rd_wo(self, u, ct, h, p):
        so = WO_SLOT[u % 5]
        bi, off = so >> 16, so & 65535
        return [f"ds_read_b64_tr_b16 {half(F[p][i], n)}, {vWoA[bi][ct >> 1]} offset:{off + (4 * h + i) * 4096 + n * 2048 + (ct & 1) * 8}"
                for i in range(4) for n in range(2)]

    def reads(self, s, lst, g0, g1):
        for r in lst:
            s.add("lds", r, after=g0, by=max(g0, g1 - 5), prio=2)
        return s.add("lds", "s_waitcnt lgkmcnt(0)", after=g1, by=g1, prio=2)

    def qproj(self):
        nq = self.nq
        s = Seg("qproj")
        for n in range(7): s.raw(*self.dma_wq(0, n))
        def xload(ks, t):
            return I(f"buffer_load_dwordx4 {Xreg(ks, t)}, {vT[1]}, {SRD_X}, {sXq[t]} offen offset:{ks * 64}", tag=(f"x{ks // 7}_{t}", None))
        for t in range(nq):
            for ks in range(7): s.raw(xload(ks, t))
        for n in range(7): s.raw(*self.dma_wq(1, n))
        for t in range(nq):
            for ks in range(7, 14): s.raw(xload(ks, t))
        for n in range(7): s.raw(*self.dma_wq(2, n))
        s.raw(waitvm(("wq0", None)), "s_barrier")
        s.raw(*self.rd_wq(0, 0, 0))
        s.raw(waitvm(("x0_0", None), lgkm=True))
        gl = 7 * nq
        for st in range(16):
            db = DBORDER[st >> 1]; hf = st & 1
            for dt in range(4):
                G = st * 4 + dt; p = G & 1
                g0 = G * gl; g1 = g0 + gl - 1
                for t in range(nq):
                    for i in range(7):
                        c = "0" if (hf == 0 and i == 0) else ACC[dt][t]
                        idx = s.m(f"{MF} {ACC[dt][t]}, {FQ[p][i]}, {Xreg(7 * hf + i, t)}, {c}")
                    if st < 2 and dt == 0 and t + 1 < nq:
                        s.add("xw", waitvm((f"x{hf}_{t+1}", None)), after=idx, by=idx, prio=3)
                    if hf == 1 and not (st == 15 and dt == 3):
                        self.q_convert(s, db, dt, t, idx + 6, min(g1 + 2 * gl - 2, 64 * gl - 1))
                if st == 0 and dt == 3:
                    s.add("xw", waitvm(("x1_0", None)), after=g1, by=g1, prio=3)
                if dt < 3:
                    self.reads(s, self.rd_wq(st, dt + 1, 1 - p), g0, g1)
                else:
                    need = (f"wq{st + 1}", None) if st < 15 else ("K", 0)
                    s.add("lds", waitvm(need), after=g0, by=g0, prio=2)
                    bar = s.add("lds", "s_barrier", after=g0, by=g0 + 1, prio=2)
                    self.reads(s, self.rd_wq(st + 1, 0, 1 - p) if st < 15 else self.rd_k(0, 0, 0, 0), g0, g1)
                    dl = []
                    if st + 3 < 16:
                        for n in range(7): dl += self.dma_wq(st + 3, n)
                    k0 = self.opt.get("kpre", 8)
                    if k0 <= st < k0 + 3:
                        j = st - k0
                        dl.append(I(f"s_add_u32 {sTmp2}, {sW4K}, {j * 16384}"))
                        for cb in range(4): dl += self.dma_kv("K", j, cb, sTmp2, ("K", j))
                    if st == 13:
                        for j in range(2):
                            dl.append(I(f"s_add_u32 {sTmp2}, {sW4K}, {j * 16384}"))
                            for cb in range(4): dl += self.dma_kv("V", j, cb, sTmp2, ("V", j))
                    k = 0
                    for x in dl:
                        s.add("dma", x, after=g0 + 1 + 4 * k, dep=[bar] if x is dl[0] else None, by=min(g0 + 4 * gl - 2, 64 * gl - 1), prio=1)
                        if x.kind == "D": k += 1
        tail = Seg("qtail")
        for t in range(nq):
            self.q_convert(tail, 3, 3, t, None, None)
        return [s, tail]

    def q_convert(self, s, db, dt, t, after, by):
        a = ACC[dt][t]; ab = dt & 1; ks = (db & 3) * 2 + (dt >> 1)
        out = []
        for r in range(4):
            out.append(I(f"v_mul_f32 {el(a, r)}, {sScale}, {el(a, r)}"))
        if db >= 4:
            d = ACC[dt & 2][t]
            for r in range(2):
                out.append(I(f"v_cvt_pk_bf16_f32 {el(d, 2 * ab + r)}, {el(a, 2 * r)}, {el(a, 2 * r + 1)}"))
            if ab:
                out.append(I(f"s_add_u32 {sTmp}, {sSp}, {ks * 4096}"))
                out.append(I(f"buffer_store_dwordx4 {d}, {vLin}, {SRD_SP}, {sTmp} offen offset:{t * 1024}", tag=("qst", None)))
        else:
            for r in range(2):
                out.append(I(f"v_cvt_pk_bf16_f32 {el(a, 2 * r)}, {el(a, 2 * r)}, {el(a, 2 * r + 1)}"))
            for r in range(2):
                out.append(I(f"v_accvgpr_write_b32 {el(Qreg(ks, t), 2 * ab + r)}, {el(a, 2 * r)}"))
        if after is None:
            s.raw(*out)
        else:
            for x in out: s.add("cv", x, after=after, by=by)

    def qk_groups(self, s, par, czero):
        nq = self.nq
        ends = {}
        for kt in range(2):
            for h in range(2):
                p = h
                for t in range(nq):
                    d = XY[par][t] if kt == 0 else Z[t]
                    for i in range(4):
                        c = d
                        if h == 0 and i == 0: c = "0" if czero else NEGM[t]
                        idx = s.m(f"{MF} {d}, {F[p][i]}, {Qreg(4 * h + i, t)}, {c}")
                    ends[(kt, t)] = idx
        return ends

    def pv_groups(self, s, par, first):
        for grp in range(4):
            p = grp & 1
            for i in range(4):
                for t in range(self.nq):
                    o = Oreg(4 * grp + i, t)
                    s.m(f"{MF} {o}, {F[p][i]}, {XY[par][t]}, {'0' if first else o}")

    def softmax_ops(self, par, t):
        x = XY[par][t]; z = Z[t]; ts = vTS[t]
        e = lambda r, n: f"v_exp_f32 {el(r, n)}, {el(r, n)}"
        A = [e(x, 0), e(x, 1), f"v_add_f32 {ts}, {el(x,0)}, {el(x,1)}", f"v_cvt_pk_bf16_f32 {el(x,0)}, {el(x,0)}, {el(x,1)}",
             e(x, 2), e(x, 3), f"v_add_f32 {ts}, {el(x,2)}, {ts}", f"v_add_f32 {ts}, {el(x,3)}, {ts}",
             f"v_cvt_pk_bf16_f32 {el(x,1)}, {el(x,2)}, {el(x,3)}"]
        B = [e(z, 0), e(z, 1), f"v_add_f32 {ts}, {el(z,0)}, {ts}", f"v_add_f32 {ts}, {el(z,1)}, {ts}",
             f"v_cvt_pk_bf16_f32 {el(x,2)}, {el(z,0)}, {el(z,1)}",
             e(z, 2), e(z, 3), f"v_add_f32 {ts}, {el(z,2)}, {ts}", f"v_add_f32 {ts}, {el(z,3)}, {ts}",
             f"v_cvt_pk_bf16_f32 {el(x,3)}, {el(z,2)}, {el(z,3)}"]
        return A, B

    def rowmax(self, par, t):
        x = XY[par][t]; z = Z[t]; m = vT[1]; u = vT[2]
        return [f"v_max3_f32 {m}, {el(x,0)}, {el(x,1)}, {el(x,2)}", f"v_max3_f32 {m}, {m}, {el(x,3)}, {el(z,0)}",
                f"v_max3_f32 {m}, {m}, {el(z,1)}, {el(z,2)}", f"v_max_f32 {m}, {m}, {el(z,3)}",
                f"v_mov_b32 {u}, {m}", f"v_permlane32_swap_b32 {m}, {u}", f"v_max_f32 {m}, {m}, {u}",
                f"v_mov_b32 {u}, {m}", f"v_permlane16_swap_b32 {m}, {u}", f"v_max_f32 {m}, {m}, {u}"]

    def kv_dma(self, s, j, g0, g1, step):
        dl = []
        for cb in range(4): dl += self.dma_kv("K", (j + 3) % 4, cb, sKoff, ("K", 3))
        dl.append(I(f"s_add_u32 {sKoff}, {sKoff}, 16384"))
        for cb in range(4): dl += self.dma_kv("V", (j + 2) % 4, cb, sVoff, ("V", 2))
        dl.append(I(f"s_add_u32 {sVoff}, {sVoff}, 16384"))
        k = 0
        for x in dl:
            s.add("dma", x, after=g0 + step * k + (1 if x.kind == "D" else 0), by=g1, prio=1)
            if x.kind == "D": k += 1

    def it0(self):
        nq = self.nq; gl = 4 * nq
        s = Seg("it0")
        s.raw(self.L("head") + ":")
        self.qk_groups(s, 0, True)
        self.reads(s, self.rd_k(0, 0, 1, 1), 0, gl - 1)
        self.reads(s, self.rd_k(0, 1, 0, 0), gl, 2 * gl - 1)
        self.reads(s, self.rd_k(0, 1, 1, 1), 2 * gl, 3 * gl - 1)
        s.add("lds", waitvm(("K", 1), ("V", 0)), after=3 * gl, by=3 * gl, prio=2)
        s.add("lds", "s_barrier", after=3 * gl, by=3 * gl + 1, prio=2)
        self.reads(s, self.rd_k(1, 0, 0, 0), 3 * gl, 4 * gl - 1)
        self.kv_dma(s, 0, 0, 3 * gl - 1, 4)
        for t in range(nq):
            s.raw(*self.rowmax(0, t))
            m = vT[1]
            for r in range(4): s.raw(f"v_sub_f32 {el(NEGM[t], r)}, 0, {m}")
            for r in range(4): s.raw(f"v_sub_f32 {el(XY[0][t], r)}, {el(XY[0][t], r)}, {m}")
            for r in range(4): s.raw(f"v_sub_f32 {el(Z[t], r)}, {el(Z[t], r)}, {m}")
            A, B = self.softmax_ops(0, t)
            s.raw(*A); s.raw(*B)
            s.raw(f"v_mov_b32 {vL[t]}, {vTS[t]}")
        return s

    def it(self, name, j, first=False, last=False, label=None, tail=None):
        nq = self.nq; gl = 4 * nq
        slot = j % 4; par = j % 2
        s = Seg(name)
        if label: s.raw(".p2align 4", label + ":")
        ends = self.qk_groups(s, par, False)
        self.pv_groups(s, 1 - par, first)
        vs = (j - 1) % 4
        self.reads(s, self.rd_k(slot, 0, 1, 1), 0, gl - 1)
        self.reads(s, self.rd_k(slot, 1, 0, 0), gl, 2 * gl - 1)
        self.reads(s, self.rd_k(slot, 1, 1, 1), 2 * gl, 3 * gl - 1)
        for grp in range(4):
            self.reads(s, self.rd_v(vs, grp, grp & 1), (3 + grp) * gl, (4 + grp) * gl - 1)
        g7 = 7 * gl
        lastv = []
        ex = {}
        for kt in range(2):
            for t in range(nq):
                for x in self.softmax_ops(par, t)[kt]:
                    if x.startswith("v_exp"):
                        x = I(x)
                        ex[next(iter(x.wr))] = s.add("exp", x, after=ends[(kt, t)] + 7, by=g7 - 6, prio=1, dep=[])
        for t in range(nq):
            A, B = self.softmax_ops(par, t)
            for x in A + B:
                if not x.startswith("v_exp"):
                    x = I(x)
                    it = s.add(f"sm{t}", x, by=g7 - 5, dep=[ex[r] for r in x.rd if r in ex], lag=1)
            lastv.append(it)
        m = vT[0]
        s.add("chk", f"v_max3_f32 {m}, {vTS[0]}, {vTS[1]}, {vTS[2]}", dep=lastv[:3], by=g7 - 4)
        if nq == 4:
            s.add("chk", f"v_max_f32 {m}, {m}, {vTS[3]}", dep=lastv[3:], by=g7 - 3)
        cmp_ = s.add("chk", f"v_cmp_lt_f32 vcc, {sThr}, {m}", by=g7 - 2)
        sl, rl = self.L("slow_" + name), self.L("ret_" + name)
        s.add("lds", f"s_cbranch_vccnz {sl}", after=g7, by=g7, dep=[cmp_], prio=2)
        lab = s.add("lds", rl + ":", after=g7, by=g7, prio=2)
        s.add("lds", waitvm(("K", 1), ("V", 0)), after=g7 + 1, by=g7 + 1, prio=2)
        s.add("lds", "s_barrier", after=g7 + 1, by=g7 + 1, prio=2)
        nxt = self.rd_v(slot, 0, 0) if last else self.rd_k((j + 1) % 4, 0, 0, 0)
        for r in nxt: s.add("lds", r, after=g7 + 2, by=8 * gl - 3, prio=2)
        for t in range(nq):
            s.add("chk", f"v_add_f32 {vL[t]}, {vL[t]}, {vTS[t]}", dep=[lab], after=g7 + 1)
        if tail:
            for x in tail[:-1]: s.add("lds", x, after=8 * gl - 2, by=8 * gl - 2, prio=2)
        s.add("lds", "s_waitcnt lgkmcnt(0)", after=8 * gl - 1, by=8 * gl - 1, prio=2)
        if tail:
            s.raw(tail[-1])
        self.kv_dma(s, j, 2, g7 - 2, 12 if nq == 4 else 9)
        self.slowpath(sl, rl, slot, par)
        return s

    def reload(self, s, kss, g0, g1):
        k = 0
        for ks in kss:
            s.add("dma", f"s_add_u32 {sTmp}, {sLd}, {ks * 4096}", after=g0 + 4 * k - 1, by=g1)
            for t in range(self.nq):
                s.add("dma", I(f"buffer_load_dwordx4 {Qreg(ks, t)}, {vLin}, {SRD_SP}, {sTmp} offen offset:{t * 1024}", tag=("rl", None)),
                      after=g0 + 4 * k, by=g1)
                k += 1

    def slowpath(self, sl, rl, slot, par):
        nq = self.nq
        s = Seg(sl)
        s.raw(sl + ":", "s_nop 15")
        for kt in range(2):
            for h in range(2):
                s.raw(*self.rd_k(slot, kt, h, 0)); s.raw("s_waitcnt lgkmcnt(0)")
                for t in range(nq):
                    d = XY[par][t] if kt == 0 else Z[t]
                    for i in range(4):
                        c = NEGM[t] if (h == 0 and i == 0) else d
                        s.pre.append(I(f"{MF} {d}, {F[0][i]}, {Qreg(4 * h + i, t)}, {c}"))
                s.raw("s_nop 7")
        s.raw("s_nop 15")
        m, u, sc = vT[1], vT[2], vT[3]
        for t in range(nq):
            s.raw(*self.rowmax(par, t))
            s.raw(f"v_ceil_f32 {m}, {m}", f"v_max_f32 {m}, 0, {m}", f"v_exp_f32 {sc}, -{m}")
            for r in range(4): s.raw(f"v_sub_f32 {el(NEGM[t], r)}, {el(NEGM[t], r)}, {m}")
            for r in range(4): s.raw(f"v_sub_f32 {el(XY[par][t], r)}, {el(XY[par][t], r)}, {m}")
            for r in range(4): s.raw(f"v_sub_f32 {el(Z[t], r)}, {el(Z[t], r)}, {m}")
            A, B = self.softmax_ops(par, t)
            s.raw(*A); s.raw(*B)
            s.raw(f"v_mul_f32 {vL[t]}, {vL[t]}, {sc}")
            pp = XY[1 - par][t]
            for r in range(4):
                s.raw(f"v_lshlrev_b32 {m}, 16, {el(pp, r)}", f"v_and_b32 {u}, 0xffff0000, {el(pp, r)}",
                      f"v_mul_f32 {m}, {m}, {sc}", f"v_mul_f32 {u}, {u}, {sc}", f"v_cvt_pk_bf16_f32 {el(pp, r)}, {m}, {u}")
            for dt in range(16):
                o = Oreg(dt, t)
                for r in range(4):
                    if o[0] == "v":
                        s.raw(f"v_mul_f32 {el(o, r)}, {el(o, r)}, {sc}")
                    else:
                        s.raw(f"v_accvgpr_read_b32 {u}, {el(o, r)}", f"v_mul_f32 {u}, {u}, {sc}", f"v_accvgpr_write_b32 {el(o, r)}, {u}")
        s.raw("s_nop 3", f"s_branch {rl}")
        self.slow.append(s)

    def lsum(self, t, dst):
        u = vT[2]; l = vL[t]
        return [f"v_mov_b32 {u}, {l}", f"v_permlane32_swap_b32 {l}, {u}", f"v_add_f32 {l}, {l}, {u}",
                f"v_mov_b32 {u}, {l}", f"v_permlane16_swap_b32 {l}, {u}", f"v_add_f32 {dst}, {l}, {u}"]

    def o_convert(self):
        out = []
        for ks in range(8):
            for t in range(self.nq):
                d = O2reg(ks, t); ops = []
                for ab in range(2):
                    o = Oreg(2 * ks + ab, t)
                    for r in range(2):
                        if o[0] == "v":
                            ops.append(f"v_cvt_pk_bf16_f32 {el(d, 2 * ab + r)}, {el(o, 2 * r)}, {el(o, 2 * r + 1)}")
                        else:
                            ops += [f"v_accvgpr_read_b32 {vT[0]}, {el(o, 2 * r)}", f"v_accvgpr_read_b32 {vT[1]}, {el(o, 2 * r + 1)}",
                                    f"v_cvt_pk_bf16_f32 {el(d, 2 * ab + r)}, {vT[0]}, {vT[1]}"]
                out.append((ks, t, ops))
        return out

    def pv15(self, head):
        nq = self.nq; gl = 4 * nq
        s = Seg(f"pv15_{head}")
        if head == 1: s.raw(self.L("tail2") + ":")
        self.pv_groups(s, 1, False)
        for grp in range(1, 4):
            self.reads(s, self.rd_v(3, grp, grp & 1), (grp - 1) * gl, grp * gl - 1)
        self.reads(s, self.rd_k(0, 0, 0, 0) if head == 0 else self.rd_wo(0, 0, 0, 0), 3 * gl, 4 * gl - 1)
        self.reload(s, range(0, 4), 0, 4 * gl - 1)
        late = []
        for ks in range(4, 8):
            for t in range(nq):
                late.append([I(f"s_add_u32 {sTmp2}, {sLd}, {ks * 4096}"),
                             I(f"buffer_load_dwordx4 {Qreg(ks, t)}, {vLin}, {SRD_SP}, {sTmp2} offen offset:{t * 1024}", tag=("rl", None))])
        for t in range(nq):
            for x in self.lsum(t, vL1[t] if head == 0 else vL[t]): s.add("ls", x)
        if head == 0:
            ks0 = -1
            for ks, t, ops in self.o_convert():
                if late: s.raw(*late.pop(0))
                s.raw(*ops)
                if ks != ks0: s.raw(f"s_add_u32 {sTmp}, {sSp}, {131072 + ks * 4096}"); ks0 = ks
                s.raw(I(f"buffer_store_dwordx4 {O2reg(ks, t)}, {vLin}, {SRD_SP}, {sTmp} offen offset:{t * 1024}", tag=("ost", None)))
            for n in range(8): s.raw(*self.dma_wo(0, n))
            s.raw(f"s_add_u32 {sLd}, {sSp}, 131072", f"s_mov_b32 {sHead}, 1", f"s_mov_b32 {sCnt}, 0")
            s.raw(waitvm(("rl", None)), f"s_branch {self.L('head')}")
        else:
            for u in (1, 2):
                for n in range(8): late.append(self.dma_wo(u, n))
            for t in range(nq):
                s.raw(f"v_rcp_f32 {vL1[t]}, {vL1[t]}", f"v_rcp_f32 {vTS[t]}, {vL[t]}", f"v_mul_f32 {vL[t]}, {vL[t]}, {vL1[t]}")
            for ks, t, ops in self.o_convert():
                if late: s.raw(*late.pop(0))
                s.raw(*ops)
            for x in late: s.raw(*x)
            s.raw(waitvm(("rl", None)))
        return s

    def oproj(self):
        nq = self.nq; gl = 4 * nq
        s = Seg("oproj")
        tail = Seg("otail")
        NG = 14 * 8
        for u in range(14):
            cb = u >> 1; hh = u & 1
            for ct in range(4):
                for h in range(2):
                    G = u * 8 + ct * 2 + h; p = h
                    g0 = G * gl; g1 = g0 + gl - 1
                    for t in range(nq):
                        a = ACC[ct][t]
                        for i in range(4):
                            b = Qreg(4 * h + i, t) if hh == 0 else O2reg(4 * h + i, t)
                            c = "0" if (hh == 0 and h == 0 and i == 0) else a
                            idx = s.m(f"{MF} {a}, {F[p][i]}, {b}, {c}")
                        if h == 1:
                            ops = []
                            for r in range(4):
                                ops.append(I(f"v_mul_f32 {el(a, r)}, {el(a, r)}, {vL[t] if hh == 0 else vTS[t]}"))
                            if hh == 1:
                                d = ACC[ct & 2][t]; ab = ct & 1
                                for r in range(2):
                                    ops.append(I(f"v_cvt_pk_bf16_f32 {el(d, 2 * ab + r)}, {el(a, 2 * r)}, {el(a, 2 * r + 1)}"))
                                if ab:
                                    ops.append(I(f"s_add_u32 {sTmp}, {sP}, {t * 114688 + (2 * cb + (ct >> 1)) * 8192}"))
                                    ops.append(I(f"buffer_store_dwordx4 {d}, {vLin}, {SRD_P}, {sTmp} offen", tag=("pst", None)))
                            if G == NG - 1:
                                tail.raw(*ops)
                            else:
                                for x in ops: s.add("cv", x, after=idx + 6, by=min(g1 + 4 * gl - 3, NG * gl - 1))
                    if G == NG - 1: continue
                    if not (ct == 3 and h == 1):
                        nct, nh = (ct, 1) if h == 0 else (ct + 1, 0)
                        self.reads(s, self.rd_wo(u, nct, nh, 1 - p), g0, g1)
                    else:
                        s.add("lds", waitvm((f"wo{u + 1}", None)), after=g0, by=g0, prio=2)
                        bar = s.add("lds", "s_barrier", after=g0, by=g0, prio=2)
                        for r in self.rd_wo(u + 1, 0, 0, 1 - p): s.add("lds", r, after=g0 + 1, by=g1 - 3, prio=2)
                        s.add("lds", "s_waitcnt lgkmcnt(0)", after=g1, by=g1, prio=2)
                        if u + 3 < 14:
                            k = 0
                            for n in range(8):
                                for x in self.dma_wo(u + 3, n):
                                    s.add("dma", x, after=g0 + 1 + 8 * k, dep=[bar], by=g0 + 8 * gl - 2, prio=1)
                                k += 1
        tail.raw("s_endpgm")
        return [s, tail]

    def build(self):
        q = self.qproj()
        i0 = self.it0()
        i1 = self.it("it1", 1, first=True)
        lp = self.L("loop"); l15 = self.L("it15")
        l2 = self.it("lp2", 2, label=lp, tail=[f"s_cmp_eq_u32 {sCnt}, 3", f"s_cbranch_scc1 {l15}"])
        l3 = self.it("lp3", 3)
        l0 = self.it("lp0", 4)
        l1 = self.it("lp1", 5, tail=[f"s_add_u32 {sCnt}, {sCnt}, 1", f"s_branch {lp}"])
        i15 = self.it("it15", 15, last=True, label=l15, tail=[f"s_cmp_eq_u32 {sHead}, 1", f"s_cbranch_scc1 {self.L('tail2')}"])
        pa = self.pv15(0); pb = self.pv15(1)
        o = self.oproj()
        static = q + [i0, i1, l2, l3, l0, l1, i15, pa, pb] + o + self.slow
        for s in static: s.schedule()
        trace = [(x, 0) for x in q]
        for hd in range(2):
            J = 16 * hd
            trace += [(i0, J), (i1, J + 1)]
            for j in range(2, 15):
                trace.append(([l0, l1, l2, l3][j % 4], J + j))
            trace += [(i15, J + 15), (pa if hd == 0 else pb, J + 15)]
        trace += [(x, 0) for x in o]
        resolve_vmcnt(trace)
        vb = self.opt.get("verbose", True)
        check_hazards(trace, vb); check_hazards(trace, vb)
        for s in self.slow: check_hazards([(s, 0)], False)
        tot = sum(s.cycles for s, _ in trace)
        if vb:
            for s in static[:len(static) - len(self.slow)]:
                print(f"  seg {s.name}: M={len(s.ms)} over={s.over} extra={s.extra} cycles={s.cycles}")
            print(f"  nq={self.nq} model cycles {tot}")
        return "\n".join(x.out() for s in static for x in s.code) + "\n"


def prologue(opt):
    s = Seg("pro")
    R = s.raw
    R("s_cmp_ge_u32 s2, 256", "s_cbranch_scc1 L_exit")
    R("s_and_b32 s53, s2, 7", "s_lshl_b32 s53, s53, 2", "s_lshr_b32 s54, s2, 6", "s_add_u32 s53, s53, s54")
    R("s_lshr_b32 s54, s2, 3", "s_and_b32 s54, s54, 7")
    R("s_lshr_b32 s55, s53, 4", "s_and_b32 s56, s53, 15")
    R("s_load_dwordx2 s[70:71], s[0:1], 96")
    R("s_mul_i32 s57, s55, 40", "s_add_u32 s58, s0, s57", "s_addc_u32 s59, s1, 0")
    for i in range(5): R(f"s_load_dwordx2 s[{60 + 2 * i}:{61 + 2 * i}], s[58:59], {8 * i}")
    R("v_lshrrev_b32 v21, 6, v0", "v_and_b32 v0, 63, v0", f"v_readfirstlane_b32 {sW}, v21")
    R(f"v_lshlrev_b32 {vLin}, 4, v0")
    R("v_lshrrev_b32 v24, 3, v0", "v_and_b32 v25, 7, v0")
    R("v_lshrrev_b32 v26, 4, v0")
    R("v_lshlrev_b32 v27, 1, v26", "v_xor_b32 v27, v27, v25", "v_lshlrev_b32 v27, 4, v27")
    R(f"v_lshl_add_u32 {vDkv}, v24, 9, v27")
    R("v_and_b32 v27, 1, v26", "v_lshlrev_b32 v27, 2, v27", "v_xor_b32 v27, v27, v25", "v_lshlrev_b32 v27, 4, v27")
    R(f"v_lshl_add_u32 {vDwq}, v24, 13, v27")
    R("v_mul_u32_u24 v28, 896, v24", f"v_add_u32 {vDwo}, v28, v27")
    R("v_and_b32 v28, 15, v0")
    R("v_bfe_u32 v29, v0, 2, 2", "v_and_b32 v30, 3, v0")
    R("v_lshrrev_b32 v31, 3, v28", "v_lshlrev_b32 v31, 12, v31", "v_and_b32 v32, 7, v28", "v_lshl_add_u32 v31, v32, 7, v31")
    R("v_and_b32 v32, 6, v28", "v_xor_b32 v32, v32, v26", f"v_lshl_add_u32 {vKa[0]}, v32, 4, v31", f"v_xor_b32 {vKa[1]}, 64, {vKa[0]}")
    R("v_lshrrev_b32 v31, 1, v26", "v_and_b32 v32, 1, v26", "v_lshl_add_u32 v33, v32, 2, v29")
    R("v_lshlrev_b32 v34, 12, v31", "v_lshl_add_u32 v34, v33, 7, v34", "v_lshl_add_u32 v34, v30, 3, v34")
    R("v_lshrrev_b32 v35, 1, v33", "v_lshl_add_u32 v34, v35, 5, v34", f"v_add_u32 {vVa[0]}, 0x10000, v34")
    for c in range(1, 4): R(f"v_xor_b32 {vVa[c]}, {32 * c}, {vVa[0]}")
    R("v_lshrrev_b32 v35, 1, v29", "v_lshl_add_u32 v35, v35, 2, v30", "v_lshlrev_b32 v35, 4, v35")
    R("v_lshl_add_u32 v36, v26, 10, v35", "v_lshl_add_u32 v36, v29, 7, v36")
    R(f"v_add_u32 {vWqA[0][0]}, 0x10000, v36", f"v_add_u32 {vWqA[1][0]}, 0x20000, v36")
    for b in range(2): R(f"v_xor_b32 {vWqA[b][1]}, 64, {vWqA[b][0]}")
    R("v_lshl_add_u32 v36, v31, 10, v35", f"v_lshl_add_u32 {vWoA[0][0]}, v33, 7, v36")
    R(f"v_add_u32 {vWoA[1][0]}, 0x10000, {vWoA[0][0]}", f"v_add_u32 {vWoA[2][0]}, 0x20000, {vWoA[0][0]}")
    for b in range(3): R(f"v_xor_b32 {vWoA[b][1]}, 64, {vWoA[b][0]}")
    R(f"v_lshl_add_u32 v36, v21, 6, v28", "v_mul_u32_u24 v36, 896, v36", f"v_lshl_add_u32 {vT[1]}, v26, 4, v36")
    R(f"s_lshl_b32 {sW4K}, {sW}, 12", f"s_mul_i32 {sW7K}, {sW}, 7168", f"s_mul_i32 {sWqOff}, {sW}, {7 * 65536}",
      f"s_mul_i32 {sWoOff}, {sW}, {4 * 7168}", f"s_lshl_b32 {sSp}, {sW}, 15", f"s_mov_b32 {sLd}, {sSp}",
      f"s_add_u32 {sKoff}, {sW4K}, {3 * 16384}", f"s_add_u32 {sVoff}, {sW4K}, {2 * 16384}",
      f"s_mov_b32 {sThr}, {f32hex(opt.get('thr', 2.0 ** 20))}", f"s_mov_b32 {sScale}, {f32hex(math.log2(math.e) / 16)}",
      f"s_mul_i32 {sP}, {sW}, {4 * 114688}", "s_lshl_b32 s57, s54, 10", f"s_add_u32 {sP}, {sP}, s57",
      f"s_mov_b32 {sCnt}, 0", f"s_mov_b32 {sHead}, 0",
      "s_mov_b32 s50, 14336", "s_mov_b32 s51, 28672", "s_mov_b32 s52, 43008")
    R("s_waitcnt lgkmcnt(0)")
    def srd(n, ptr, off, size):
        R(f"s_add_u32 s{n}, s{ptr}, {off}", f"s_addc_u32 s{n + 1}, s{ptr + 1}, 0", f"s_and_b32 s{n + 1}, s{n + 1}, 0xffff",
          f"s_mov_b32 s{n + 2}, {size}", f"s_mov_b32 s{n + 3}, 0x20000")
    R("s_sub_u32 s73, 3670016, s57"); srd(8, 66, "s57", "s73")
    R("s_mul_i32 s72, s56, 215040"); srd(4, 60, "s72", 215040)
    R("s_lshl_b32 s72, s56, 22", "s_lshl_b32 s73, s54, 19", "s_add_u32 s72, s72, s73")
    srd(12, 62, "s72", 524288); srd(16, 64, "s72", 524288)
    R("s_mul_i32 s72, s54, 458752"); srd(20, 68, "s72", 458752)
    R("s_lshl_b32 s72, s2, 18", f"s_add_u32 s72, s72, {WS_SPILL}"); srd(24, 70, "s72", 262144)
    R("s_mul_i32 s72, s53, 1720320"); srd(28, 70, "s72", 1720320)
    if opt.get("two"):
        R(f"s_cmp_eq_u32 {sW}, 3", "s_cbranch_scc0 L_main4",
          "s_getpc_b64 s[72:73]", "L_pc3:", "s_add_u32 s72, s72, L_main3-L_pc3", "s_addc_u32 s73, s73, 0", "s_setpc_b64 s[72:73]")
    s.schedule()
    check_hazards([(s, 0)], opt.get("verbose", True))
    return "\n".join(x.out() for x in s.code) + "\n"


def reducer():
    s = Seg("red")
    R = s.raw
    R("s_cmp_ge_u32 s2, 840", "s_cbranch_scc1 L_rexit")
    R("s_load_dwordx2 s[12:13], s[0:1], 96", "s_load_dwordx2 s[14:15], s[0:1], 80")
    R("v_lshrrev_b32 v1, 6, v0", "v_and_b32 v0, 63, v0", "v_readfirstlane_b32 s16, v1")
    R("v_lshlrev_b32 v1, 4, v0", "v_and_b32 v2, 15, v0", "v_lshrrev_b32 v3, 4, v0",
      "v_mul_u32_u24 v2, 1792, v2", "v_lshl_add_u32 v2, v3, 4, v2")
    R("s_lshl_b32 s17, s2, 2", "s_add_u32 s17, s17, s16")
    R(f"s_mul_hi_u32 s18, s17, {-(-(1 << 32) // 7)}", "s_mul_i32 s19, s18, 7", "s_sub_u32 s19, s17, s19")
    R("s_cmp_ge_u32 s18, 240", "s_cselect_b32 s20, 240, 0", "s_cselect_b32 s21, 896, 0", "s_sub_u32 s18, s18, s20")
    R(f"s_mul_i32 s18, s18, {16 * 1792}", "s_lshl_b32 s19, s19, 7", "s_add_u32 s18, s18, s19", "s_add_u32 s18, s18, s21")
    R("s_lshl_b32 s17, s17, 14")
    R("s_waitcnt lgkmcnt(0)")
    R("s_mov_b32 s4, s12", "s_and_b32 s5, s13, 0xffff", f"s_mov_b32 s6, {6720 * 8192}", "s_mov_b32 s7, 0x20000")
    R("s_mov_b32 s8, s14", "s_and_b32 s9, s15, 0xffff", f"s_mov_b32 s10, {3840 * 1792}", "s_mov_b32 s11, 0x20000")
    for n in range(16):
        if n % 4 == 0 and n: R("s_add_u32 s17, s17, 4096")
        R(f"buffer_load_dwordx4 {v4(8 + 4 * n)}, v1, s[4:7], s17 offen offset:{(n % 4) * 1024}")
    for b in range(2):
        acc = 72 + 8 * b
        for j in range(8):
            n = 8 * b + j
            R(f"s_waitcnt vmcnt({15 - n + b})")
            for r in range(4):
                src = 8 + 4 * n + r
                if j == 0:
                    R(f"v_lshlrev_b32 v{acc + 2 * r}, 16, v{src}", f"v_and_b32 v{acc + 2 * r + 1}, 0xffff0000, v{src}")
                else:
                    R(f"v_lshlrev_b32 v4, 16, v{src}", f"v_and_b32 v5, 0xffff0000, v{src}",
                      f"v_add_f32 v{acc + 2 * r}, v{acc + 2 * r}, v4", f"v_add_f32 v{acc + 2 * r + 1}, v{acc + 2 * r + 1}, v5")
        for r in range(4): R(f"v_cvt_pk_bf16_f32 v{88 + 4 * b + r}, v{acc + 2 * r}, v{acc + 2 * r + 1}")
        R(f"buffer_store_dwordx4 {v4(88 + 4 * b)}, v2, s[8:11], s18 offen offset:{64 * b}")
    R("L_rexit:", "s_endpgm")
    s.schedule()
    check_hazards([(s, 0)], False)
    return "\n".join(x.out() for x in s.code) + "\n"


def kd(name, vgpr, acc, sgpr):
    return (f".amdhsa_kernel {name}\n  .amdhsa_next_free_vgpr {vgpr}\n  .amdhsa_next_free_sgpr {sgpr}\n  .amdhsa_accum_offset {acc}\n"
            "  .amdhsa_group_segment_fixed_size 0\n  .amdhsa_kernarg_size 104\n  .amdhsa_user_sgpr_count 2\n"
            "  .amdhsa_user_sgpr_kernarg_segment_ptr 1\n  .amdhsa_system_sgpr_workgroup_id_x 1\n.end_amdhsa_kernel\n")


def generate(opt):
    k1 = NAME + "_kernel"; k2 = "reduce_partials_kernel"
    out = (f"; @launch kernel={k1} grid=(256,1,1) block=(256,1,1) lds=163840\n"
           f"; @launch kernel={k2} grid=(840,1,1) block=(256,1,1) lds=0\n")
    out += '.amdgcn_target "amdgcn-amd-amdhsa--gfx950"\n.text\n'
    out += f".globl {k2}\n.p2align 8\n.type {k2},@function\n{k2}:\n" + reducer()
    out += f".globl {k1}\n.p2align 8\n.type {k1},@function\n{k1}:\n"
    out += "s_branch L_start\nL_exit:\ns_endpgm\nL_start:\n" + prologue(opt)
    out += "L_main4:\n" + Gen(4, "a", opt).build()
    if opt.get("two"):
        out += "L_main3:\n" + Gen(3, "b", opt).build()
    out += '.section .rodata,"a"\n.p2align 6\n' + kd(k1, 512, 256, 96) + ".p2align 6\n" + kd(k2, 96, 96, 32)
    return out


if __name__ == "__main__":
    opt = {}
    path = f"cdna_kernels/{NAME}.s"
    for a in sys.argv[1:]:
        k, _, v = a.partition("=")
        if k == "out": path = v
        else: opt[k] = eval(v) if v else True
    txt = generate(opt)
    open(path, "w").write(txt)
    print("wrote", path, len(txt), "bytes")
```

```python
import re

REG_RE = re.compile(r"^(-?)(?:abs\()?([vas])(?:(\d+)|\[(\d+):(\d+)\])\)?$")
TRANS = ("v_exp_f32", "v_rcp_f32", "v_log_f32", "v_rsq_f32", "v_sqrt_f32")


def regs_of(op):
    op = op.strip()
    if op in ("vcc", "m0", "exec", "scc"):
        return {op}
    m = REG_RE.match(op)
    if not m:
        return set()
    c = m.group(2)
    if m.group(3) is not None:
        return {(c, int(m.group(3)))}
    return {(c, i) for i in range(int(m.group(4)), int(m.group(5)) + 1)}


class I:
    def __init__(self, text, tag=None, need=None):
        self.text = text
        self.tag = tag
        self.need = need
        self.vmn = None
        self.pre_nop = 0
        self.pre_s = False
        self.parse()

    def parse(self):
        t = self.text.split(";")[0].strip()
        self.rd = set(); self.wr = set(); self.A = set(); self.C = set(); self.data = set()
        self.trans = False
        if t.endswith(":"):
            self.kind = "L"; self.mn = "label"; return
        if t.startswith("."):
            self.kind = "L"; self.mn = "dir"; return
        parts = t.split(None, 1)
        mn = parts[0]
        self.mn = mn
        rest = re.sub(r"\s+(op_sel|quad_perm|row_mask|bank_mask)\S*", "", parts[1]) if len(parts) > 1 else ""
        ops = [o.strip() for o in rest.split(",")]
        if ops:
            last = ops[-1].split()
            mods = last[1:]
            ops[-1] = last[0] if last else ""
        R = [regs_of(o) for o in ops]
        if mn.startswith("v_mfma"):
            self.kind = "M"
            self.wr = R[0]; self.A = R[1] | R[2]; self.C = R[3]; self.rd = self.A | self.C
        elif mn.startswith("v_permlane"):
            self.kind = "P"; self.wr = R[0] | R[1]; self.rd = R[0] | R[1]
        elif mn.startswith("v_"):
            self.trans = mn.replace("_e32", "").replace("_e64", "") in TRANS
            self.kind = "E" if self.trans else "V"
            self.wr = set(R[0]) if R else set()
            for r in R[1:]: self.rd |= r
            if mn.startswith("v_fmac") or mn.startswith("v_writelane"):
                self.rd |= R[0]
        elif mn.startswith("ds_read"):
            self.kind = "T"; self.wr = R[0]; self.rd = R[1]
        elif mn.startswith("ds_write"):
            self.kind = "U"
            for r in R: self.rd |= r
            self.data = R[1]
        elif mn.startswith("buffer_load") or mn.startswith("global_load"):
            if "lds" in mods:
                self.kind = "D"
                for r in R: self.rd |= r
                self.rd.add("m0")
            else:
                self.kind = "G"; self.wr = R[0]
                for r in R[1:]: self.rd |= r
        elif mn.startswith("buffer_store") or mn.startswith("buffer_atomic") or mn.startswith("global_store") or mn.startswith("global_atomic"):
            self.kind = "O"
            for r in R: self.rd |= r
            self.data = R[0] if mn.startswith("buffer") else R[1]
            if "atomic" in mn and "sc0" in mods:
                self.wr = R[0]
        elif mn.startswith("buffer_"):
            self.kind = "O"
        elif mn == "s_waitcnt":
            self.kind = "W"
        elif mn == "s_barrier":
            self.kind = "B"
        elif mn == "s_nop":
            self.kind = "N"; self.n = int(ops[0]) + 1
        elif mn.startswith("s_cbranch") or mn in ("s_branch", "s_endpgm", "s_setpc_b64", "s_swappc_b64", "s_call_b64"):
            self.kind = "J"
        elif mn.startswith("s_"):
            self.kind = "S"
            if mn.startswith("s_cmp"):
                for r in R: self.rd |= r
            elif R:
                self.wr = set(R[0])
                for r in R[1:]: self.rd |= r
        else:
            raise ValueError("cannot parse " + t)

    def is_valu(self):
        return self.kind in "VEP"

    def is_vmem(self):
        return self.kind in "DGO"

    def out(self):
        s = self.text
        if self.need is not None:
            s = s.format(n=self.vmn)
        pre = ""
        n = self.pre_nop
        while n > 0:
            k = min(n, 16)
            pre += f"s_nop {k-1}\n"
            n -= k
        return pre + s


class Block(I):
    def __init__(self, lines, kind="S"):
        super().__init__("s_nop 0")
        self.text = "\n".join(lines)
        self.kind = kind; self.mn = "block"


class Pair(I):
    def __init__(self, first, second, tag=None):
        super().__init__(second, tag=tag)
        f = I(first)
        self.rd |= f.rd; self.wr |= f.wr
        self.text = first + "\n" + second
        self.pre_s = True


def waitvm(*tags, lgkm=False):
    return I("s_waitcnt vmcnt({n})" + (" lgkmcnt(0)" if lgkm else ""), need=list(tags))


class Item:
    def __init__(self, ins, after, by, dep, prio, lag, ok=None):
        self.ins = ins; self.after = after; self.by = by; self.dep = dep or []; self.prio = prio
        self.ok = ok
        self.lag = lag
        self.placed = None
        self.soft = 0


def gap_time(seq):
    t = 4
    lastv = False
    for x in seq:
        k = x.kind
        if x.pre_s: t += 4; lastv = False
        if k in "SWBN":
            t += 4; lastv = False
        elif k == "T":
            t += 12 if lastv else 8; lastv = False
        elif k == "V":
            t = max(t, 8) + 4; lastv = True
        elif k in "EP":
            t = max(t, 8) + 8; lastv = True
        elif k in "DG":
            t = max(t, 8) + 8; lastv = False
        elif k == "O":
            t = max(t, 8) + 20; lastv = False
        elif k == "U":
            t = max(t + (4 if lastv else 0), 8) + (20 if "b128" in x.mn else 12); lastv = False
        elif k == "J":
            t += 14; lastv = False
        elif k == "L":
            pass
    return t


class Seg:
    def __init__(self, name):
        self.name = name
        self.pre = []
        self.ms = []
        self.streams = {}
        self.post = []
        self.code = None
        self.cycles = 0
        self.cap = 16
        self.vsp = 0

    def m(self, text):
        self.ms.append(I(text))
        return len(self.ms) - 1

    def add(self, stream, ins, after=0, by=None, dep=None, prio=0, lag=0, ok=None, tight=False):
        if isinstance(ins, str):
            ins = I(ins)
        st = self.streams.get(stream)
        if st and dep is None:
            pv = st[-1].ins
            if (ins.kind == "D" and "m0" in pv.wr and (not ins.pre_s or not tight)) or (pv.trans and pv.wr & ins.rd):
                dep = [st[-1]]; lag = 1
            elif ins.kind == "P" and pv.wr & ins.rd:
                dep = [st[-1]]; lag = 2
        it = Item(ins, after, by, dep, prio, lag, ok)
        self.streams.setdefault(stream, []).append(it)
        return it

    def raw(self, *ins):
        for x in ins:
            for line in (x.split("\n") if isinstance(x, str) else [x]):
                if isinstance(line, str):
                    if not line.strip():
                        continue
                    line = I(line.strip())
                (self.post if self.ms else self.pre).append(line)

    def schedule(self):
        n = len(self.ms)
        code = list(self.pre)
        for _ in range(6):
            for s in self.streams.values():
                nxt = n - 1
                for it in reversed(s):
                    b = n - 1 if it.by is None else it.by
                    it.by = min(b, nxt)
                    nxt = it.by
                    for d in it.dep:
                        d.by = min(n - 1 if d.by is None else d.by, max(0, it.by - it.lag))
        for k, s in self.streams.items():
            for it in s:
                if it.by < it.after - it.soft:
                    raise ValueError(f"{self.name}/{k}: empty window [{it.after},{it.by}] for {it.ins.text}")
        pos = {k: 0 for k in self.streams}
        over = 0
        vfree = 0
        for g in range(n):
            code.append(self.ms[g])
            chosen = []
            while True:
                cands = []
                for k, s in self.streams.items():
                    if pos[k] < len(s):
                        it = s[pos[k]]
                        if all(d.placed is not None and (d.placed + it.lag <= g or it.by <= g) for d in it.dep) and ((it.after <= g and (it.ok is None or it.ok(g)) and (g >= vfree or not it.ins.is_vmem())) or it.by <= g):
                            cands.append((it.by > g, -it.prio, it.by, k, it))
                cands.sort(key=lambda c: c[:3])
                done = False
                for notforced, _, _, k, it in cands:
                    best = None
                    lo = 0
                    for idx, c in enumerate(chosen):
                        if c.stream == k or c in it.dep:
                            lo = idx + 1
                    for p in range(lo, len(chosen) + 1):
                        trial = chosen[:p] + [it] + chosen[p:]
                        t = gap_time([c.ins for c in trial])
                        if best is None or t < best[0]:
                            best = (t, p)
                    lone_ok = it.ins.kind in "OJU" and all(c.ins.kind in "SWB" for c in chosen) and len(chosen) <= (0 if (it.ins.kind == "J" or it.ins.pre_s) else 1)
                    if best[0] <= (16 if it.ins.kind == "T" else (self.cap(g) if callable(self.cap) else self.cap)) or not notforced or lone_ok:
                        it.stream = k
                        it.placed = g
                        if it.ins.is_vmem(): vfree = g + self.vsp * getattr(it.ins, "heavy", 1)
                        chosen.insert(best[1], it)
                        pos[k] += 1
                        done = True
                        break
                if not done:
                    break
            t = gap_time([c.ins for c in chosen])
            over += max(0, t - 16)
            code.extend(c.ins for c in chosen)
        for k, s in self.streams.items():
            assert pos[k] == len(s), (self.name, k, pos[k], len(s))
        code.extend(self.post)
        extra = gap_time([x for x in self.pre if x.kind != "M"]) + gap_time([x for x in self.post if x.kind != "M"]) - 8
        self.over = over
        self.extra = extra
        self.cycles = 16 * n + over + extra
        self.code = code
        return code


def resolve_vmcnt(trace, lenient=False):
    issued = []
    waited = set()
    def res(tag, J):
        return (tag[0], None if tag[1] is None else tag[1] + J)
    for seg, J in trace:
        for x in seg.code:
            if x.is_vmem() and not x.mn.startswith("buffer_wbl2") and not x.mn.startswith("buffer_inv"):
                issued.append(res(x.tag, J) if x.tag else None)
                if issued[-1] in waited or (issued[-1] and issued[-1][0] == "st" and any(w[0] == "st" and w[1] >= issued[-1][1] for w in waited)):
                    raise ValueError(f"{issued[-1]} issued after it was waited for in {seg.name}")
            elif x.need is not None:
                n = 63
                for tg in x.need:
                    r = res(tg, J)
                    waited.add(r)
                    idx = [i for i, t in enumerate(issued) if t == r]
                    if not idx:
                        if lenient and tg[0] == "st": continue
                        raise ValueError(f"wait for never-issued tag {r} in {seg.name}")
                    n = min(n, len(issued) - 1 - idx[-1])
                x.vmn = n if x.vmn is None else min(x.vmn, n)


def check_hazards(trace, verbose=True):
    lin = []
    for seg, J in trace:
        lin.extend((x, seg) for x in seg.code if x.kind != "L")
    fixes = 0
    for i, (c, seg) in enumerate(lin):
        need = 0
        dist = c.pre_nop
        why = None
        j = i - 1
        while j >= 0 and dist < 12:
            p = lin[j][0]
            req = 0
            if p.kind == "M":
                if c.kind == "M":
                    if p.wr & c.A: req = 8
                    elif p.wr & c.C and p.wr != c.C: req = 6
                    elif p.wr & c.wr and not (p.wr & c.C): req = 8
                elif (c.is_valu() or c.is_vmem() or c.kind in "TU") and (p.wr & (c.rd | c.wr)): req = 8
                if c.is_valu() and (p.C & c.wr): req = max(req, 3)
            elif p.is_valu():
                vw = {r for r in p.wr if r[0] in "va" and r != "vcc"}
                sw = p.wr - vw
                if c.kind == "M" and vw & c.rd: req = 2
                if (c.kind == "P" or c.mn.endswith("_dpp")) and vw & c.rd: req = 2
                if p.trans and c.is_valu() and vw & c.rd: req = max(req, 1)
                if c.mn.startswith("v_readfirstlane") or c.mn.startswith("v_readlane"):
                    if vw & c.rd: req = max(req, 1)
                if c.is_vmem() and sw & c.rd: req = 5
                if c.is_valu() and sw & c.rd: req = max(req, 2)
                if c.kind == "S" and sw & c.rd: req = max(req, 2)
            elif p.kind == "S":
                if "m0" in p.wr and c.kind == "D" and not c.pre_s: req = 1
            elif p.kind in "OU":
                if p.data & c.wr: req = 2
            if req - dist > need:
                need = req - dist; why = p
            dist += (p.n if p.kind == "N" else 1) + p.pre_nop
            j -= 1
        if need > 0:
            c.pre_nop += need
            fixes += 1
            if verbose:
                print(f"  hazard in {seg.name}: +{need} nop before [{c.text}] after [{why.text}]")
    return fixes


def check_pending(trace, junk=()):
    lds = {}; dsq = []
    vm = []
    bad = 0
    for seg, J in trace:
        for x in seg.code:
            used = (x.rd | x.wr) - set(junk)
            for r in used:
                if r in lds and not (x.kind == "T" and r in x.wr):
                    print(f"  PENDING lds {r} in {seg.name}: {x.text}  <- {lds[r].text}"); bad += 1
            for regs, p in vm:
                if regs & used:
                    print(f"  PENDING vmem in {seg.name}: {x.text}  <- {p.text}"); bad += 1
            txt = x.out()
            m = re.search(r"lgkmcnt\((\d+)\)", txt)
            if m:
                n = int(m.group(1))
                dsq = dsq[len(dsq) - n:] if n else []
                lds = {r: y for y in dsq for r in y.wr}
            if x.kind in "TU": dsq.append(x)
            m = re.search(r"vmcnt\((\d+)\)", txt)
            if m:
                n = int(m.group(1))
                vm = vm[len(vm) - n:] if n else []
            if x.kind == "T":
                for r in x.wr: lds[r] = x
            if x.is_vmem(): vm.append(({r for r in x.wr if r[0] != "s"} if x.kind == "G" else set(), x))
    assert bad == 0


def gapmap(seg, gl, g0=0, g1=None):
    rows = []; cur = []; gap = None; n = -1
    for x in seg.code:
        if x.kind == "M":
            if gap is not None: cur.append(gap)
            gap = ""; n += 1
        elif gap is not None and x.kind != "L":
            gap += ("s" if x.pre_s else "") + x.kind
    cur.append(gap)
    for i in range(g0 * gl, len(cur) if g1 is None else g1 * gl, gl):
        print(f"   g{i // gl:3d}: " + " ".join(f"{(c if len(c) < 12 else c[:3] + '*' + str(len(c))) or '.':4s}" for c in cur[i:i + gl]))


def intervals(seg):
    out = []; t = 0; gap = None
    for x in seg.code:
        if x.kind == "M":
            if gap is not None: t += max(16, gap_time(gap))
            gap = []
        elif gap is not None:
            gap.append(x)
            if x.kind == "B": out.append(t); t = 0
    return out


def relax_lds_waits(seg, gl):
    tail = []; g = -1
    for x in seg.code:
        if x.kind == "M": g += 1
        elif x.kind in "TU": tail.append(x)
        elif x.text == "s_waitcnt lgkmcnt(0)" and getattr(x, "frag", False):
            n = 0
            for y in reversed(tail):
                if y.kind == "U" or getattr(y, "use", -1) > g + gl: n += 1
                else: break
            if n: x.text = f"s_waitcnt lgkmcnt({min(n, 8)})"
            tail = []
```

```python
import sys, math, struct
from asmlib import *

NAME = "concat_heads__mha_block_cached__gqa_block_cached__near_ridge"
MF = "v_mfma_f32_16x16x32_bf16"

def f32hex(x):
    return "0x%08x" % struct.unpack("<I", struct.pack("<f", x))[0]

def v4(n): return f"v[{n}:{n+3}]"
def a4(n): return f"a[{n}:{n+3}]"
def half(reg, n):
    c = reg[0]; b = int(reg[2:].split(":")[0]) + 2 * n
    return f"{c}[{b}:{b+1}]"
def el(reg, n):
    c = reg[0]; b = int(reg[2:].split(":")[0]) + n
    return f"{c}{b}"

SRD_X, SRD_WQ, SRD_K, SRD_V, SRD_WO, SRD_P, SRD_O, SRD_D = (f"s[{n}:{n+3}]" for n in (4, 8, 12, 16, 20, 28, 92, 96))
sWoM0, sWoM1, sPr, sOut = "s24", "s25", "s26", "s27"
(sW, sW4K, sKoff, sVoff, sThr, sScale, sTmp, sSoff, sP, sCnt, sHead, sKcur, sWqOff, sWoOff, sW2K, sWqOff2, sTmp2,
 sSpin, sXst, sWoN1, sWoN2, sOutC, sMode, sThrLo, sWarm, sClr) = (f"s{n}" for n in range(32, 58))
sCode = "s[58:59]"
sDbgOff, sXccBit, sCodeOff, sPw = "s90", "s91", "s3", "s68"
vLin, vDkv, vDwo, vPark = "v1", "v2", "v3", "v4"
vKa = ["v5", "v6"]
vVa = ["v7", "v8", "v9", "v10"]
vWqA = ["v11", "v12"]
vDwq, vDx = "v13", "v14"
vL1 = ["v11", "v12", "v13", "v14"]
vWoA = ["v15", "v5", "v16", "v6"]
LAND = 160
vFlagA = "v17"
vSt = ["v18", "v19"]
vJunk = "v20"
vChk, vC0, vC1, vU = "v0", "v21", "v22", "v23"
vXa = [vC0, vC1]
vL = [f"v{24+t}" for t in range(4)]
vTS = [f"v{28+t}" for t in range(4)]
vPoll, vPollA, vOutA = vU, vPark, vDkv
SRD_K2, SRD_V2 = "s[60:63]", "s[64:67]"
KVBIAS = 2688
vD4kv = ["v152", "v153", "v154", "v155"]
vD4wq = [vDwq, "v156", "v157", "v158"]
sTab = [sMode, sWoN1, sWoN2, sTmp2, "s69", "s70", "s71"]
sWqK = [sWqOff2, sWqOff, "s86", "s87"]
sRot = "s84"
PARK0 = 65536
def DB(n): return n & 1 if n < 8 else n >> 2
def KQ(n): return n >> 1 if n < 8 else n & 3
def KS0(n): return ([0, 2, 6, 10] if n < 8 else [0, 4, 6, 10])[KQ(n)]
def NKS(n): return ([2, 4, 4, 4] if n < 8 else [4, 2, 4, 4])[KQ(n)]
SLOT = 262144
FLAG0 = 9 * SLOT
OOB = "0x40000000"


class Gen:
    def __init__(self, nq, sfx, opt):
        self.nq = nq; self.sfx = sfx; self.opt = opt
        self.slow = []; self.fpol = ""
        w = 4 * nq
        self.gl = w
        self.ACC = [[v4(32 + w * d + 4 * t) for t in range(nq)] for d in range(4)]
        self.NEGM = self.ACC[0]; self.XY = [self.ACC[1], self.ACC[2]]; self.Z = self.ACC[3]
        self.NV = 10 if nq == 4 else 6
        self.ov = 32 + 4 * w
        fb = 8 * w
        self.F = [[a4(fb + 4 * i) for i in range(4)], [a4(fb + 16 + 4 * i) for i in range(4)]]
        self.oa = fb + 32
        self.okU = lambda g: g % w in opt.get("upos", (8, 10, 12) if opt.get("qw64", 1) else (8, 11))
        self.solo = opt.get("solo", 1)
        self.kvown = not self.solo or nq == 3

    def O(self, dt, t):
        w = self.gl
        return v4(self.ov + w * dt + 4 * t) if dt < self.NV else a4(self.oa + w * (dt - self.NV) + 4 * t)
    def Q(self, ks, t): return a4(self.gl * ks + 4 * t)
    def X(self, ks, t): return self.O(ks, t)
    def O2(self, ks, t):
        h = self.NV // 2
        if ks < h: return self.O(2 * ks, t)
        if self.nq == 4: return self.O(2 * (ks - h) + 1, t)
        return self.Q(ks, t)
    def PK(self, ks, t): return v4(160 + 12 * ks + 4 * t)
    def O1(self, ks, t): return self.Q(ks, t) if self.nq == 4 else self.PK(ks, t)
    def RL(self, m):
        if self.nq == 4: return self.O(7 + 2 * (m >> 2), m & 3)
        return self.O(1 + 2 * (m // 3), m % 3)
    def L(self, s): return f"L{s}_{self.sfx}"

    def stamp(self, s, gap=None, stream="lds", by=None, lv=(1,)):
        if self.opt.get("stamp") not in lv: return
        ops = ["s_mov_b32 s83, m0", "s_mov_b32 m0, s82", "s_memtime s[74:75]", "s_memrealtime s[80:81]", "s_waitcnt lgkmcnt(0)",
               f"v_writelane_b32 {vSt[0]}, s74, m0", f"v_writelane_b32 {vSt[1]}, s80, m0", "s_mov_b32 m0, s83", "s_addk_i32 s82, 1"]
        if gap is None: s.raw(*ops)
        else: s.add(stream, Block(ops), after=gap, by=gap if by is None else by, prio=2)

    def dma_wq(self, n, rel):
        db = DB(n); kq = KQ(n)
        out = []
        if self.solo and n >= 8 and not (kq in self.opt.get("qsplit", ()) and n < self.opt.get("qsplitn", 32)):
            for r in range(NKS(n) if self.nq == 3 else 0):
                ld = lambda i: f"buffer_load_dwordx4 {vD4wq[i]}, {SRD_WQ}, {sSoff} offen offset:{i * 1024} {self.opt.get('wpol', '')} lds"
                out += [I(f"s_mov_b32 m0, {(n % 4) * 16384 + r * 4096}"),
                        Pair(f"s_add_u32 {sSoff}, {sTab[(KS0(n) + r) >> 1]}, {(r & 1) * 32 * 8192 + db * 128}", ld(0), tag=("st", rel))]
                out += [I(ld(i), tag=("st", rel)) for i in range(1, 4)]
            return out
        for i in range(NKS(n)):
            assert n < 8 or kq != 1
            wl, wg = sW4K if NKS(n) == 4 else sW2K, sWqK[kq] if (n < 8 or kq) else "s85"
            out += [I(f"s_add_u32 m0, {wl}, {(n % 4) * 16384 + i * 1024}"),
                    Pair(f"s_add_u32 {sSoff}, {wg}, {i * 8 * 8192 + db * 128}",
                         f"buffer_load_dwordx4 {vDwq}, {SRD_WQ}, {sSoff} offen lds", tag=("st", rel))]
        return out

    def dma_wo(self, u, rel, solo=False):
        kq = u & 3
        out = []
        if solo:
            ld = lambda i: f"buffer_load_dwordx4 {([vDwo] + vD4kv)[i]}, {SRD_WO}, {sSoff} offen offset:{i * 1024} lds"
            for r in range(4 if self.nq == 3 else 0):
                out += [I(f"s_add_u32 m0, {[sWoM0, sWoM1][(u >> 2) & 1]}, {kq * 16384 + (r - 3) * 4096}"),
                        Pair(f"s_add_u32 {sSoff}, {[sWoOff, sWoN1, sWoN2][u >> 2]}, {(kq * 128 + (r - 3) * 32) * 896}", ld(0), tag=("st", rel))]
                out += [I(ld(i), tag=("st", rel)) for i in range(1, 4)]
            return out
        for i in range(4):
            out += [I(f"s_add_u32 m0, {[sWoM0, sWoM1][(u >> 2) & 1]}, {kq * 16384 + i * 1024}"),
                    Pair(f"s_add_u32 {sSoff}, {[sWoOff, sWoN1, sWoN2][u >> 2]}, {(kq * 128 + i * 8) * 896}",
                         f"buffer_load_dwordx4 {vDwo}, {SRD_WO}, {sSoff} offen {self.opt.get('wpol', '')} lds", tag=("st", rel))]
        return out

    def dma_kv(self, which, slot, rel):
        srd, soff = (SRD_K, sKoff) if which == "K" else (SRD_V, sVoff)
        out = []
        if self.solo:
            srd = SRD_K2 if which == "K" else SRD_V2
            ld = lambda i: f"buffer_load_dwordx4 {vD4kv[i]}, {srd}, {soff} offen offset:{i * 1024} {self.opt.get('kvpol', 'nt')} lds"
            for rb in range(4 if self.nq == 3 else 0):
                out += [I(f"s_mov_b32 m0, {slot * 16384 + rb * 4096}"), Pair(f"s_add_u32 {soff}, {soff}, 4096", ld(0), tag=("st", rel))]
                out += [I(ld(i), tag=("st", rel)) for i in range(1, 4)]
            return out
        for cb in range(4):
            out += [I(f"s_add_u32 m0, {sW4K}, {slot * 16384 + cb * 896}"),
                    I(f"buffer_load_dwordx4 {vDkv}, {srd}, {soff} offen offset:{cb * 128} {self.opt.get('kvpol', 'nt')} lds", tag=("st", rel))]
        out.append(I(f"s_add_u32 {soff}, {soff}, 16384"))
        return out

    def put_dma(self, s, dl, g0, g1, step=None, early=6, burst=None):
        step = step or (5 if self.nq == 4 else 4)
        k = 0
        nd = sum(x.kind == "D" for x in dl)
        if self.solo and self.nq == 3 and nd >= 4 and dl[1].tag[0] == "st" and dl[2].kind == "D":
            g0 = max([g0] + [it.after + 1 for it in s.streams.get("dma", [])[-2:]])
            span = min(g1 - g0, int(nd * (burst or self.opt.get("burst", 2))))
            for x in dl:
                a = g0 + span * k // nd
                it = s.add("dma", x, after=a if x.kind == "D" else max(0, g0 - early), by=a, prio=1.5, tight=True)
                if x.kind == "D": k += 1
            return
        for x in dl:
            if x.kind == "S": it = s.add("dma", x, after=max(0, g0 - early), by=g1, prio=-2)
            else: it = s.add("dma", x, after=g0 + step * k, by=g1, prio=1.5)
            it.soft = step * k
            if x.kind in "DG": k += 1

    def rd_k(self, slot, kt, h, p):
        return [f"ds_read_b128 {self.F[p][i]}, {vKa[i & 1]} offset:{slot * 16384 + kt * 8192 + ((4 * h + i) >> 1) * 1024}" for i in range(4)]

    def rd_v(self, slot, grp, p):
        return [f"ds_read_b64_tr_b16 {half(self.F[p][i], n)}, {vVa[i]} offset:{slot * 16384 + n * 8192 + grp * 1024}"
                for i in range(4) for n in range(2)]

    def wq_group(self, n, g):
        return [(g, i) for i in range(4)] if NKS(n) == 4 else [(2 * g + (i >> 1), (i ^ (i >> 1)) & 1) for i in range(4)]

    def rd_wq(self, n, g, p):
        return [f"ds_read_b64_tr_b16 {half(self.F[p][i], m)}, {vWqA[dt >> 1]} offset:{(n % 4) * 16384 + k * 4096 + m * 512 + (dt & 1) * 8}"
                for i, (dt, k) in enumerate(self.wq_group(n, g)) for m in range(2)]

    def rd_wo(self, u, ct, p):
        return [f"ds_read_b64_tr_b16 {half(self.F[p][i], m)}, {vWoA[ct]} offset:{(u % 4) * 16384 + i * 4096 + m * 2048}"
                for i in range(4) for m in range(2)]

    def reads(self, s, lst, g0, bar=None, skip=0, tail=None, own=True):
        g1 = g0 + self.gl - 1
        a = g0 + skip
        if bar is not None:
            if own: s.add("lds", waitvm(("st", bar)), after=a, by=a, prio=2)
            elif self.opt.get("keepw"): s.add("lds", "s_waitcnt vmcnt(63)", after=a, by=a, prio=2)
            s.add("lds", "s_barrier", after=a, by=a, prio=2)
            a += 1
        for k, r in enumerate(lst): s.add("lds", r, after=a, by=min(a + k, g1 - 2) if (self.solo and self.nq == 3) else g1 - 2, prio=2)
        for x in tail or []: s.add("lds", x, after=g1 - 1, by=g1 - 1, prio=2)
        it = s.add("lds", "s_waitcnt lgkmcnt(0)", after=g1, by=g1, prio=2)
        it.ins.frag = True
        return it

    def park_write(self, reg, ks, t):
        off = (ks * 4 + t) * 1024
        if self.opt.get("w64"):
            return [f"ds_write_b64 {vPark}, {half(reg, n)} offset:{off + 8 * n}" for n in range(2)]
        return [f"ds_write_b128 {vPark}, {reg} offset:{off}"]

    def xdma(self, c):
        nq = self.nq
        out = []
        for b in range(2 * nq):
            m0 = f"s_add_u32 m0, {sXst}, {(c % 3) * 8192 + b * 1024}"
            out += [Block([f"s_lshr_b32 {sTmp}, {sTab[c]}, 12", m0]) if b == 0 else I(m0),
                    Pair(f"s_add_u32 {sSoff}, {sTmp}, {b * 7168}",
                         f"buffer_load_dwordx4 {vDx}, {SRD_X}, {sSoff} offen lds", tag=(f"x{c}", None))]
        return out

    def qproj(self, s):
        nq = self.nq; gl = self.gl
        su0, su1 = late_setup(self.opt)
        xdma = self.xdma
        def xread(c):
            return [waitvm((f"x{c}", None))] + [I(f"ds_read_b128 {self.X(2 * c + par, t)}, {vXa[par]} offset:{(c % 3) * 8192 + t * 2048}")
                                                for t in range(nq) for par in range(2)]
        st4 = lambda: self.stamp(s, lv=(4,))
        x1 = xdma(1); nc1 = min(2 * self.opt.get("nc1", 4), len(x1))
        first = x1[:nc1]; npre = 0
        s.raw(*xdma(0)[12:]); s.raw(*self.dma_wq(1, 1))
        s.raw(*su0); self.stamp(s, lv=(1, 4)); s.raw(*self.until(6))
        s.raw(*su1); st4(); s.raw(*self.until(7))
        if nq == 3 and self.solo:
            for i in range(4): s.add("su", f"v_add_u32 {vD4kv[i]}, {KVBIAS - 896 * i}, {vDkv}", by=8 * gl)
            for i in range(1, 4): s.add("su", f"v_add_u32 {vD4wq[i]}, {(65536 - 1024) * i}, {vDwq}", by=8 * gl)
            for d, b in ((60, 12), (64, 16)):
                s.add("su", Block([f"s_sub_u32 s{d}, s{b}, {KVBIAS}", f"s_subb_u32 s{d + 1}, s{b + 1}, 0", f"s_mov_b32 s{d + 2}, {524288 + KVBIAS}",
                                   f"s_mov_b32 s{d + 3}, 0x20000"]), by=8 * gl)
        s.raw(*first[npre:]); st4()
        s.raw(*self.until(8)); s.raw(waitvm(("st", 0))); s.raw(*self.until(9)); s.raw("s_barrier"); st4()
        s.raw(*self.rd_wq(0, 0, 0))
        s.raw(*xread(0)); s.raw("s_waitcnt lgkmcnt(0)")
        s.raw(*self.until(1))
        self.stamp(s, lv=(1, 4))
        G = 0
        xr = {2: xread(1), 3: xread(2)}
        if self.opt.get("xlazy", 0):
            for c, a, use in zip((3, 4, 5, 6), self.opt.get("xg", (7, 9, 13.5, 17)), (11, 12, 20, 20)):
                for y in xread(c):
                    s.add("xr", y, after=int(a * gl), by=use * gl - 4, prio=0.5)
                    y.use = use * gl
        else:
            for c, G0 in zip((3, 4, 5, 6), (8, 10, 14, 18)): xr[G0] = xread(c)
        acc0_free = []
        def paced(dl, a, b):
            nd = len(dl) // 2
            for k in range(nd):
                t = a + (b - a) * k // nd
                s.add("dma", dl[2 * k], after=max(0, a - 2), by=t, prio=1.5)
                s.add("dma", dl[2 * k + 1], after=t, by=t, prio=1.5, tight=True)
        for n in range(32):
            db = DB(n); kq = KQ(n)
            ng = NKS(n)
            st0 = G * gl
            if n == 0: paced(x1[nc1:] + xdma(2) + self.dma_wq(2, 2), 0, int(gl * self.opt.get("p0", 1.5)))
            elif n == 1: paced(self.dma_wq(3, 3) + xdma(3), int(gl * self.opt.get("p0", 1.5)), int(gl * self.opt.get("p1", 3.5)))
            elif n == 2: paced(self.dma_wq(4, 4) + xdma(4) + self.dma_wq(5, 5), st0, st0 + 3 * gl)
            elif n in (3, 4): paced(self.dma_wq(n + 3, n + 3) + xdma(n + 2), st0 - gl + 1, st0 + 3 * gl)
            elif n >= 29 and self.opt.get("kvst", (101.2, 104.5, 107.8, 110.9)) and nq == 3:
                a, b = self.opt.get("kvst", (101.2, 104.5, 107.8, 110.9))[n - 29:n - 27]
                assert a * gl > st0 - gl
                self.put_dma(s, self.dma_kv("KKV"[n - 29], (n + 3) % 4, n + 3), int(a * gl), int(b * gl), burst=9)
            else:
                dl = self.dma_wq(n + 3, n + 3) if n + 3 < 32 else self.dma_kv("KKV"[n - 29], (n + 3) % 4, n + 3)
                self.put_dma(s, dl, st0 - gl + 1 if self.opt.get("ruleb", 1) else st0, st0 + (ng - 1) * gl - 2 + (gl // 2 if ng == 2 else 0), step=3)
            for g in range(ng):
                p = G & 1; g0 = G * gl
                own = nq == 3 or db < 4 or self.opt.get("qw64", 1)
                plain = kq == 3 and (n == 31 or not own)
                for t, ks in self.walk(0 if plain else G):
                    seen = set()
                    for i in ks:
                        dt, k = self.wq_group(n, g)[i]
                        a = self.ACC[dt][t] if db != 1 else (self.Q(4 + dt, t) if nq == 4 else self.PK(dt, t))
                        idx = s.m(f"{MF} {a}, {self.F[p][i]}, {self.X(KS0(n) + k, t)}, {'0' if (kq == 0 and dt not in seen) else a}")
                        seen.add(dt)
                    if kq == 3:
                        for x in self.q_convert(db, g, t):
                            x = I(x)
                            dg = (7, 12)[db] if db < 2 else (4 if own and n < 31 else 3)
                            by = g0 + dg * gl - 3 + 4 * (t if plain else min(self.pos(G + dg, t), self.pos(G, t)))
                            if x.kind == "U": it = s.add("cvw", x, by=by, dep=[it], ok=self.okU, prio=0.6)
                            else: it = s.add("cv", x, after=idx + 6, by=by)
                        if n == 31 and g == 1: acc0_free.append(it)
                extra = xr.get(G, [])
                if g + 1 < ng:
                    self.reads(s, self.rd_wq(n, g + 1, 1 - p) + extra, g0)
                    if n < 9: self.stamp(s, g0 + gl - 1, lv=(4,))
                else:
                    self.reads(s, (self.rd_wq(n + 1, 0, 1 - p) if n < 31 else self.rd_k(0, 0, 0, 0)) + extra, g0, bar=n + 1,
                               own=bool(self.dma_wq(n + 1, 0)) if n < 31 else self.kvown)
                    self.stamp(s, g0 + gl - 1, lv=(1, 2, 3) if n == 31 else ((1, 3) if kq == 3 else (3,)) + ((4,) if n < 9 else ()))
                for nn, pt in ((7, 5), (31, 2)):
                    if n == nn and g == ng - 1 and self.until(pt): s.add("lds", Block(self.until(pt), "J"), after=g0 + gl - 1, by=g0 + gl - 1, prio=2)
                G += 1
        for a0 in self.opt.get("qtouch", (50, 76, 98)) if nq == 3 else ():
            for x in self.code_touch(): s.add("ct", x, after=a0 * gl, by=(a0 + 2) * gl)
        prof = [[4 * int(c, 16) for c in str(self.opt.get(k, d)).lstrip("p").ljust(32, "0")]
                for k, d in (("kvp", "pccbbcdddddccba987543222111100000"), ("kvl", "p0"))]
        pcs = [(sr, J * 16384 + (prof[0][J] * 128 if n else 0), prof[n][J]) for n in range(2) for J in reversed(range(32))
               for sr in (SRD_V, SRD_K) if prof[n][J]]
        if nq == 3:
            f0, f1, pw = self.opt.get("wspan", (7, 99, 0.87))
            cum = 0; cur = None; tot = sum(x[2] for x in pcs)
            for sr, off, nl in pcs:
                a0 = int((f0 + (f1 - f0) * ((cum + nl / 2) / tot) ** pw) * gl)
                if self.opt.get("wramp"):
                    f0_, fm, f1_, r0 = self.opt.get("wramp")
                    A = (fm - f0_) * (1 + r0) / 2; y = (cum + nl / 2) / tot * (A + f1_ - fm)
                    k_ = (1 - r0) / (fm - f0_)
                    a0 = int((fm + y - A if y >= A else f0_ + (math.sqrt(r0 * r0 + 2 * k_ * y) - r0) / k_) * gl)
                cum += nl
                if nl != cur:
                    cur = nl
                    s.add("wm", f"v_min_u32 v159, {(cur - 1) * 16}, {vLin}", by=a0)
                    s.add("wm", f"v_lshlrev_b32 v159, 3, v159", by=a0)
                s.add("wm", Pair(f"s_mov_b32 s72, {off}", f"buffer_load_dword {vJunk}, v159, {sr}, s72 offen"), after=a0, by=a0 + 3)
        if nq == 3:
            a0 = self.opt.get("hs0", 20) * gl
            for x in [f"v_mov_b32 {vChk}, 0", f"v_lshrrev_b32 {vU}, 2, {vLin}",
                      Block(["s_mov_b64 exec, 15", f"buffer_store_dword {vChk}, {vU}, {SRD_P}, {sClr} offen sc1", "s_mov_b64 exec, -1"], "O")]:
                it = s.add("hs", x, after=a0, by=a0 + gl)
            it.ins.tag = ("clr", None)
            a0 += 12 * gl
            for x in [waitvm(("clr", None)), f"v_mov_b32 {vChk}, {sXccBit}",
                      Block(["s_mov_b64 exec, 1", f"buffer_atomic_add {vChk}, {vU}, {SRD_D}, {sDbgOff} offen sc1", "s_mov_b64 exec, -1"], "O")]:
                s.add("hs", x, after=a0, by=a0 + gl)
        return acc0_free

    def align(self):
        p, n = self.opt.get("lalign", (5, 0))
        return [f".p2align {p}"] + ["s_nop 0"] * n

    def until(self, point):
        if self.opt.get("x_rec") == point: return ["s_memrealtime s[88:89]", "s_waitcnt lgkmcnt(0)"]
        if self.opt.get("x_at") != point: return []
        self.nunt = getattr(self, "nunt", 0) + 1
        lb = self.L(f"until{self.nunt}")
        return [lb + ":", "s_memrealtime s[80:81]", "s_waitcnt lgkmcnt(0)", "s_sub_u32 s80, s80, s88", f"s_cmp_lt_u32 s80, {int(self.opt.get('x_until') * 100)}",
                f"s_cbranch_scc1 {lb}"]

    def code_touch(self, vC0=vC0):
        return [f"v_lshl_add_u32 {vC0}, {vLin}, 3, {sCodeOff}", f"v_min_u32 {vC0}, L_end-L_main4, {vC0}",
                f"global_load_dword {vJunk}, {vC0}, {sCode}"]

    def lines16(self, d, u, base):
        return [f"v_lshrrev_b32 {u}, 8, {vLin}", f"v_min_u32 {u}, 1, {u}", f"v_lshl_add_u32 {u}, {u}, 30, {base}", f"v_lshl_add_u32 {d}, {vLin}, 3, {u}"]

    def q_convert(self, db, dt, t):
        a = self.ACC[dt][t]; ab = dt & 1; ks = (db & 3) * 2 + (dt >> 1)
        out = []
        if db == 1 and self.nq == 3: a = self.PK(dt, t)
        elif db == 1:
            a = v4(24 + 4 * (t & 1))
            out = [f"v_accvgpr_read_b32 {el(a, r)}, {el(self.Q(4 + dt, t), r)}" for r in range(4)]
        out += [f"v_mul_f32 {el(a, r)}, {sScale}, {el(a, r)}" for r in range(4)]
        if db >= 4 and self.nq == 4 and self.opt.get("qw64", 1):
            out += [f"v_cvt_pk_bf16_f32 {el(a, r)}, {el(a, 2 * r)}, {el(a, 2 * r + 1)}" for r in range(2)]
            out.append(f"ds_write_b64 {vPark}, {half(a, 0)} offset:{(ks * 4 + t) * 1024 + 8 * ab}")
        elif db >= 4:
            d = self.ACC[dt & 2][t] if self.nq == 4 else self.PK(ks, t)
            out += [f"v_cvt_pk_bf16_f32 {el(d, 2 * ab + r)}, {el(a, 2 * r)}, {el(a, 2 * r + 1)}" for r in range(2)]
            if ab and self.nq == 4: out += self.park_write(d, ks, t)
        else:
            out += [f"v_cvt_pk_bf16_f32 {el(a, 2 * r)}, {el(a, 2 * r)}, {el(a, 2 * r + 1)}" for r in range(2)]
            out += [f"v_accvgpr_write_b32 {el(self.Q(ks, t), 2 * ab + r)}, {el(a, 2 * r)}" for r in range(2)]
        return out

    def pos(self, G, t):
        return self.nq - 1 - t if (G & 1 and self.opt.get("tsnake", 1)) else t

    def walk(self, G):
        flip = self.nq * G if self.opt.get("tsnake", 1) else 0
        return [(self.pos(G, n), (3, 2, 1, 0) if (flip + n) & 1 else (0, 1, 2, 3)) for n in range(self.nq)]

    def qk_half(self, G):
        return (0, 1, 1, 0)[G] if self.opt.get("tsnake", 1) else G & 1

    def qk_groups(self, s, par, czero=()):
        ends = {}
        for G in range(4):
            kt = G >> 1; h = self.qk_half(G)
            for t, ks in self.walk(G):
                d = self.XY[par][t] if kt == 0 else self.Z[t]
                for n_, i in enumerate(ks):
                    c = d
                    if G & 1 == 0 and n_ == 0: c = "0" if kt in czero else self.NEGM[t]
                    idx = s.m(f"{MF} {d}, {self.F[G & 1][i]}, {self.Q(4 * h + i, t)}, {c}")
                ends[(kt, t)] = idx
        return ends

    def pv_groups(self, s, par, first, snake=False):
        at = {}
        for grp in range(4):
            order = [(i, t) for i in range(4) for t in range(self.nq)]
            if snake: order = [(i, t if i % 2 == 0 else self.nq - 1 - t) for i in range(4) for t in range(self.nq)]
            for i, t in order:
                if True:
                    o = self.O(4 * grp + i, t)
                    at[(4 * grp + i, t)] = s.m(f"{MF} {o}, {self.F[grp & 1][i]}, {self.XY[par][t]}, {'0' if first else o}")
        return at

    def softmax_ops(self, par, t, ts):
        x = self.XY[par][t]; z = self.Z[t]
        e = lambda r, n: f"v_exp_f32 {el(r, n)}, {el(r, n)}"
        A = [e(x, 0), e(x, 1), f"v_add_f32 {ts}, {el(x,0)}, {el(x,1)}", f"v_cvt_pk_bf16_f32 {el(x,0)}, {el(x,0)}, {el(x,1)}",
             e(x, 2), e(x, 3), f"v_add_f32 {ts}, {el(x,2)}, {ts}", f"v_add_f32 {ts}, {el(x,3)}, {ts}",
             f"v_cvt_pk_bf16_f32 {el(x,1)}, {el(x,2)}, {el(x,3)}"]
        B = [e(z, 0), e(z, 1), f"v_add_f32 {ts}, {el(z,0)}, {ts}", f"v_add_f32 {ts}, {el(z,1)}, {ts}",
             f"v_cvt_pk_bf16_f32 {el(x,2)}, {el(z,0)}, {el(z,1)}",
             e(z, 2), e(z, 3), f"v_add_f32 {ts}, {el(z,2)}, {ts}", f"v_add_f32 {ts}, {el(z,3)}, {ts}",
             f"v_cvt_pk_bf16_f32 {el(x,3)}, {el(z,2)}, {el(z,3)}"]
        return A, B

    def softmax(self, s, par, ends, ts, gchk, gate=None):
        ex = {}; last = [None] * self.nq
        for kt in range(2):
            for t, _ in self.walk(1):
                for x in self.softmax_ops(par, t, ts[t])[kt]:
                    if x.startswith("v_exp"):
                        x = I(x)
                        ex[next(iter(x.wr))] = s.add("exp", x, after=ends[(kt, t)] + 7, by=gchk - 6, prio=1, dep=[gate] if gate else [])
        for t, _ in self.walk(1):
            A, B = self.softmax_ops(par, t, ts[t])
            for x in A + B:
                if not x.startswith("v_exp"):
                    x = I(x)
                    it = s.add(f"sm{t}", x, by=gchk - 5, dep=[ex[r] for r in x.rd if r in ex], lag=1, prio=0.5)
            last[t] = it
        return last

    def fold(self, s, op, ts, by, dep):
        s.add("chk", f"v_{op}3_f32 {vChk}, {ts[0]}, {ts[1]}, {ts[2]}", dep=dep[:3], by=by, prio=0.5)
        if self.nq == 4: s.add("chk", f"v_{op}_f32 {vChk}, {vChk}, {ts[3]}", dep=dep[3:], by=by, prio=0.5)

    def slow_stub(self, name, target):
        sl, rl = self.L("slow_" + name), self.L("ret_" + name)
        stub = Seg(sl)
        stub.raw(sl + ":", f"s_call_b64 s[84:85], {self.L(target)}", f"s_branch {rl}")
        self.slow.append(stub)
        return sl, rl

    def it(self, s, name, j, rel, dA, dB, d0=(), last=False, tail=None, head=None):
        nq = self.nq; gl = self.gl
        par = j % 2
        ks_, vs_, nx_ = (2 * j - 1) % 4, (2 * j) % 4, (2 * j + 1) % 4
        o = len(s.ms)
        ends = self.qk_groups(s, par, (0,) if (head and head[2]) else ())
        at = self.pv_groups(s, 1 - par, bool(head), snake=not head)
        self.stamp(s, o)
        self.reads(s, self.rd_k(ks_, 0, 1, 1), o)
        self.reads(s, self.rd_k(ks_, 1, self.qk_half(2), 0), o + gl)
        gate = None
        if head:
            gc = o + 2 * gl - 1
            lastv = self.softmax(s, 0, head[0], vL, gc - 1)
            self.fold(s, "min", vL, gc - 4, lastv)
            s.add("chk", f"v_cmp_gt_f32 s[72:73], {sThrLo}, {vChk}", by=gc - 3, prio=0.5)
            self.fold(s, "max", vL, gc - 2, lastv)
            c = s.add("chk", f"v_cmp_lt_f32 vcc, {sThr}, {vChk}", by=gc - 2, prio=0.5)
            sl, rl = self.slow_stub(name + "h", "slowh")
            gate = s.add("lds", Block(["s_or_b64 s[72:73], s[72:73], vcc", f"s_cbranch_scc1 {sl}", rl + ":"], "J"), after=gc, by=gc, dep=[c] + head[1], prio=2)
            s.add("lds", f"s_add_u32 {sKcur}, {sKcur}, 16384", after=gc + 1, by=gc + 1, prio=2)
        self.reads(s, self.rd_k(ks_, 1, self.qk_half(3), 1), o + 2 * gl)
        for grp in range(4):
            self.reads(s, self.rd_v(vs_, grp, grp & 1), o + (3 + grp) * gl, bar=rel + 1 if grp == 0 else None, own=self.kvown)
        g7 = o + 7 * gl
        lastv = self.softmax(s, par, ends, vTS, g7, gate)
        self.fold(s, "max", vTS, g7 - 3, lastv)
        c = s.add("chk", f"v_cmp_lt_f32 vcc, {sThr}, {vChk}", by=g7 - 2, prio=0.5)
        sl, rl = self.slow_stub(name, f"slow{par}")
        lab = s.add("lds", Block([f"s_cbranch_vccnz {sl}", rl + ":"], "J"), after=g7, by=g7, dep=[c], prio=2)
        nxt = self.rd_v(nx_, 0, 0) if last else self.rd_k(nx_, 0, 0, 0)
        self.reads(s, nxt + [f"s_add_u32 {sKcur}, {sKcur}, 16384"], g7, bar=rel + 2, skip=1, tail=tail[:-1] if tail else None, own=self.kvown)
        for t in range(nq):
            s.add("chk", f"v_add_f32 {vL[t]}, {vL[t]}, {vTS[t]}", dep=[lab], after=g7 + 1, by=g7 + gl - 1, prio=0.5)
        if tail: s.raw(tail[-1])
        for k in range(self.opt.get("x_pad", 0)): s.add("pad", "s_nop 10", after=o + 5 + k, by=o + 5 + k)
        sm = self.opt.get("smooth", 0) if (self.solo and nq == 3) else 0
        if sm and 2 <= j <= 14: d0 = self.dma_kv("V", (2 * j + 2) % 4, rel + 3)[5:]
        if sm and not last: dB = dB[:5]
        self.put_dma(s, d0, o, o + 3 * gl - 1, burst=sm or None)
        self.put_dma(s, dA, o + 3 * gl + 1, g7 - 1, step=3, burst=sm or None)
        self.put_dma(s, dB, g7 + 2, g7 + gl - 3 if not last else g7 + (4 * gl - 1 if sm else 2 * gl), step=3, burst=sm or None)
        return at

    def reg_dma(self, j, rel):
        return self.dma_kv("K", (2 * j + 3) % 4, rel + 4), self.dma_kv("V", (2 * j + 4) % 4, rel + 5)

    def head_start(self, s, name, rel, negm_dep, tail=None):
        gl = self.gl
        o = len(s.ms)
        fresh = negm_dep is not None
        ends = self.qk_groups(s, 0, (0, 1) if fresh else ())
        self.reads(s, self.rd_k(0, 0, 1, 1), o)
        self.reads(s, self.rd_k(0, 1, self.qk_half(2), 0), o + gl)
        self.reads(s, self.rd_k(0, 1, self.qk_half(3), 1), o + 2 * gl)
        self.reads(s, self.rd_k(1, 0, 0, 0), o + 3 * gl, bar=rel + 1, own=self.kvown)
        sm = self.opt.get("smooth", 0)
        self.put_dma(s, self.dma_kv("K", 3, rel + 3), o - gl + 1, o + (3 * gl - 1 if sm else 2 * gl), step=3, burst=sm or None)
        self.put_dma(s, self.dma_kv("V", 0, rel + 4), o + 3 * gl + 1, o + (7 * gl - 1 if sm else 6 * gl), step=3, burst=sm or None)
        z = []
        if fresh:
            for t in range(self.nq):
                for r in range(4):
                    z = [s.add("nz", f"v_mov_b32 {el(self.NEGM[t], r)}, 0", dep=negm_dep, lag=1, by=o + 6 * gl - 4)]
        return self.it(s, name, 1, rel + 1, *self.reg_dma(1, rel + 1), head=(ends, z, fresh), tail=tail)

    def rowmax(self, par, t, m, u):
        x = self.XY[par][t]; z = self.Z[t]
        return [f"v_max3_f32 {m}, {el(x,0)}, {el(x,1)}, {el(x,2)}", f"v_max3_f32 {m}, {m}, {el(x,3)}, {el(z,0)}",
                f"v_max3_f32 {m}, {m}, {el(z,1)}, {el(z,2)}", f"v_max_f32 {m}, {m}, {el(z,3)}",
                f"v_mov_b32 {u}, {m}", f"v_permlane32_swap_b32 {m}, {u}", f"v_max_f32 {m}, {m}, {u}",
                f"v_mov_b32 {u}, {m}", f"v_permlane16_swap_b32 {m}, {u}", f"v_max_f32 {m}, {m}, {u}"]

    def slowpath(self, par, first):
        nq = self.nq
        name = "slowh" if first else f"slow{par}"
        s = Seg(name)
        Fs = self.F[1 if first else 0]
        ad, u, m, sc = vChk, vU, vChk, vC0
        s.raw(self.L(name) + ":", "s_nop 15")
        s.raw(f"v_bfe_u32 {ad}, {vLin}, 4, 4", f"v_lshrrev_b32 {u}, 8, {vLin}", f"v_lshlrev_b32 {u}, 4, {u}", f"v_lshl_add_u32 {ad}, {ad}, 9, {u}")
        for kt in range(2):
            s.raw(f"s_add_u32 s72, {sKcur}, {kt * 8192}")
            for h in range(2):
                for i in range(4):
                    s.raw(f"buffer_load_dwordx4 {Fs[i]}, {ad}, {SRD_K}, s72 offen offset:{(4 * h + i) * 64}")
                s.raw("s_waitcnt vmcnt(0)")
                for t in range(nq):
                    d = self.XY[par][t] if kt == 0 else self.Z[t]
                    for i in range(4):
                        c = self.NEGM[t] if (h == 0 and i == 0) else d
                        s.pre.append(I(f"{MF} {d}, {Fs[i]}, {self.Q(4 * h + i, t)}, {c}"))
                s.raw("s_nop 7")
        s.raw("s_nop 15", f"v_accvgpr_write_b32 {el(Fs[0], 0)}, {sc}")
        for t in range(nq):
            s.raw(*self.rowmax(par, t, m, u))
            s.raw(f"v_ceil_f32 {m}, {m}")
            regs = [self.NEGM[t], self.XY[par][t], self.Z[t]]
            if first: regs.append(self.XY[1][t])
            else: s.raw(f"v_max_f32 {m}, 0, {m}", f"v_exp_f32 {sc}, -{m}")
            for reg in regs:
                for r in range(4): s.raw(f"v_sub_f32 {el(reg, r)}, {el(reg, r)}, {m}")
            A, B = self.softmax_ops(par, t, vL[t] if first else vTS[t])
            s.raw(*A); s.raw(*B)
            if first: continue
            s.raw(f"v_mul_f32 {vL[t]}, {vL[t]}, {sc}")
            pp = self.XY[1 - par][t]
            for r in range(4):
                s.raw(f"v_lshlrev_b32 {m}, 16, {el(pp, r)}", f"v_and_b32 {u}, 0xffff0000, {el(pp, r)}",
                      f"v_mul_f32 {m}, {m}, {sc}", f"v_mul_f32 {u}, {u}, {sc}", f"v_cvt_pk_bf16_f32 {el(pp, r)}, {m}, {u}")
            for dt in range(16):
                o = self.O(dt, t)
                for r in range(4):
                    if o[0] == "v":
                        s.raw(f"v_mul_f32 {el(o, r)}, {el(o, r)}, {sc}")
                    else:
                        s.raw(f"v_accvgpr_read_b32 {u}, {el(o, r)}", f"v_mul_f32 {u}, {u}, {sc}", f"v_accvgpr_write_b32 {el(o, r)}, {u}")
        s.raw(f"v_accvgpr_read_b32 {sc}, {el(Fs[0], 0)}", "s_nop 3", "s_setpc_b64 s[84:85]")
        self.slow.append(s)

    def lsum(self, l, u):
        return [f"v_mov_b32 {u}, {l}", f"v_permlane32_swap_b32 {l}, {u}", f"v_add_f32 {l}, {l}, {u}",
                f"v_mov_b32 {u}, {l}", f"v_permlane16_swap_b32 {l}, {u}", f"v_add_f32 {l}, {l}, {u}"]

    def o_convert(self, ks, t, d):
        ops = []
        for ab in range(2):
            o = self.O(2 * ks + ab, t)
            for r in range(2):
                s0, s1 = el(o, 2 * r), el(o, 2 * r + 1)
                if o[0] == "a":
                    ops += [f"v_accvgpr_read_b32 {vC0}, {s0}", f"v_accvgpr_read_b32 {vC1}, {s1}"]
                    s0, s1 = vC0, vC1
                if d[0] == "v":
                    ops.append(f"v_cvt_pk_bf16_f32 {el(d, 2 * ab + r)}, {s0}, {s1}")
                else:
                    ops += [f"v_cvt_pk_bf16_f32 {vC0}, {s0}, {s1}", f"v_accvgpr_write_b32 {el(d, 2 * ab + r)}, {vC0}"]
        return ops

    def pv15(self, s, head, late):
        nq = self.nq; gl = self.gl
        if head == 0: d = (self.dma_kv("K", 1, 4), self.dma_kv("V", 2, 5), self.dma_kv("K", 0, 3))
        else: d = (self.dma_wo(1, 4), self.dma_wo(2, 5), self.dma_wo(0, 3))
        self.it(s, s.name + "15", 15, 0, *d, last=True)
        o = 8 * gl
        self.stamp(s, o)
        at = self.pv_groups(s, 1, False)
        for grp in range(1, 4):
            self.reads(s, self.rd_v(3, grp, grp & 1), o + (grp - 1) * gl)
        self.reads(s, self.rd_k(0, 0, 0, 0) if head == 0 else self.rd_wo(0, 0, 0), o + 3 * gl, bar=3, own=self.kvown or head == 1)
        self.stamp(s, o + 4 * gl - 1, lv=(1, 2) if head else (1,))
        for t in range(nq):
            if head == 0: s.add("ls", f"v_mov_b32 {vL1[t]}, {vL[t]}", after=o, by=o + 4 * gl, prio=0.45)
            else:
                for x in self.lsum(vL1[t], vC0) + [f"v_rcp_f32 {vL1[t]}, {vL1[t]}"]: s.add("ls", x, by=7 * gl - 1, prio=0.45)
                for x in self.lsum(vL[t], vTS[t]): s.add(f"ls{t}", x, after=o, by=o + 5 * gl, prio=0.45)
        back = {}
        for ks in range(8):
            by = o + (4 + (late if ks >= 4 else 0)) * gl - 4
            for t in range(nq):
                if nq == 4:
                    back[ks, t] = s.add("pk", f"ds_read_b128 {self.Q(ks, t)}, {vPark} offset:{(ks * 4 + t) * 1024}", after=7 * gl + 1, by=by, prio=0.4,
                                        ok=lambda g: g % gl < gl - self.opt.get("pkend", 0))
                    back[ks, t].ins.use = by + 4
                elif head == 0:
                    for r in range(4):
                        back[ks, t] = s.add("pk", f"v_accvgpr_write_b32 {el(self.Q(ks, t), r)}, {el(self.PK(ks, t), r)}", after=7 * gl + 1, by=by, prio=0.4)
        return at, back

    def mid(self):
        nq = self.nq; gl = self.gl
        s = Seg("mid")
        done, back = self.pv15(s, 0, 1)
        self.mode_ops(s)
        at = self.head_start(s, "mid", 3, None, tail=[f"s_mov_b32 {sHead}, 1", f"s_mov_b32 {sCnt}, 0", f"s_branch {self.L('loop')}"])
        lim = 23 * gl - 2
        wr = {}
        u0 = self.opt.get("umin", 12)
        okm = lambda g: g >= u0 * gl and g % gl in (self.opt.get("uqk", (4, 8, 12)) if 12 <= g // gl < 19 else self.opt.get("upv", (9, 12)))
        for ks in range(8):
            for t in range(nq):
                if nq == 4:
                    dd = 2 * ks if ks < 5 else (9, 7, 9)[ks - 5]
                    d = self.O(dd, t)
                    by = min(at[(2 * ks, t)], at[(dd, t)], lim) - 3
                    dep = [wr[5, t]] if ks == 7 else None
                else:
                    d = self.PK(ks, t)
                    by = min(at[(2 * ks, t)], lim) - 3
                    dep = [back[ks, t]]
                for x in self.o_convert(ks, t, d):
                    it = s.add("cv", x, after=done[(2 * ks + 1, t)] + 7, by=by, dep=dep)
                if nq == 4:
                    for x in self.park_write(d, ks, t):
                        wr[ks, t] = s.add("cvw", x, by=by, dep=[it, back[ks, t]], ok=okm, prio=self.opt.get("uprio", 1.2))
        return s

    def owarm(self, s, f0, f1, k0=0, k1=99):
        if self.nq != 3: return
        gl = self.gl
        nl = self.opt.get("olines", 32); step = nl * 128
        if k0 == 0:
            s.add("wm", f"s_xor_b32 {sTmp}, {sHead}, 1", by=1)
            s.add("wm", f"s_lshl_b32 {sTmp}, {sTmp}, 30", by=2)
            s.add("wm", f"v_min_u32 v159, {(nl - 1) * 16}, {vLin}", by=2)
            s.add("wm", f"v_lshl_add_u32 v159, v159, 3, {sTmp}", by=3)
        wl = []
        if self.opt.get("wowarm", 1):
            wl += [Pair(f"s_add_u32 {sTmp}, {sWarm}, {min(o, 28672 - step)}", f"buffer_load_dword {vJunk}, v159, {SRD_WO}, {sTmp} offen") for o in range(0, 28672, step)]
        if self.opt.get("pwarm", 1):
            wl += [Pair(f"s_add_u32 {sTmp}, {sPw}, {k * SLOT + o}", f"buffer_load_dword {vJunk}, v159, {SRD_P}, {sTmp} offen")
                   for k in range(2) for o in range(0, 32768, step)]
        wl = wl[k0:k1]
        for k, x in enumerate(wl):
            a0 = int((f0 + k * (f1 - f0) / len(wl)) * gl)
            s.add("wm", x, after=max(a0, 4), by=max(a0, 4) + 4, prio=0.7)

    def mode_ops(self, s):
        gl = self.gl
        dbl = f"buffer_load_dword {vPoll}, {vC0}, {SRD_D}, {sDbgOff} offen sc1"
        chain = [f"s_and_b32 s73, {sMode}, 0x0f0f0f0f", f"s_lshr_b32 s72, {sMode}, 4", "s_and_b32 s72, s72, 0x0f0f0f0f",
                 "s_add_u32 s73, s73, s72", "s_mul_i32 s73, s73, 0x01010101", "s_lshr_b32 s73, s73, 24"]
        mw, mo = self.L("modewait"), self.L("modeok")
        s.add("md", f"v_mov_b32 {vC0}, 0", by=4)
        s.add("md", I(dbl, tag=("dbg", None)), by=gl)
        s.add("md", waitvm(("dbg", None)), after=5 * gl, by=6 * gl)
        c = s.add("md", f"v_readfirstlane_b32 {sMode}, {vPoll}", by=6 * gl)
        for x in chain: s.add("md", x, by=7 * gl - 3, dep=[c], lag=2)
        s.add("md", Block(["s_cmp_lt_u32 s73, 8", f"s_cbranch_scc1 {mw}", mo + ":"], "J"), by=7 * gl - 2)
        w = Seg("modewait")
        w.raw(mw + ":", f"s_cmp_eq_u32 {sSpin}, 0", f"s_cbranch_scc1 {mo}", f"s_sub_u32 {sSpin}, {sSpin}, 1", dbl, "s_waitcnt vmcnt(0)",
              f"v_readfirstlane_b32 {sMode}, {vPoll}", "s_nop 1", *chain, "s_cmp_lt_u32 s73, 8", f"s_cbranch_scc1 {mw}", f"s_branch {mo}")
        self.slow.append(w)

    def o_finish(self, ct, t, rel, md, pol=None):
        if pol is None: pol = self.fpol
        a = self.ACC[ct][t]; d = self.ACC[ct & 2][t]; ab = ct & 1
        ops = [I(f"v_mul_f32 {el(a, r)}, {el(a, r)}, {vTS[t]}") for r in range(4)]
        ops += [I(f"v_cvt_pk_bf16_f32 {el(d, 2 * ab + r)}, {el(a, 2 * r)}, {el(a, 2 * r + 1)}") for r in range(2)]
        if ab:
            ops.append(Pair(f"s_add_u32 {sTmp}, {sP}, {t * 16384 + (ct >> 1) * 8192}",
                            f"buffer_store_dwordx4 {d}, {vLin}, {SRD_P}, {sTmp} offen {pol if md == 'f' else 'sc1'}", tag=("pst", rel)))
        return ops

    def slot_step(self, r, md):
        return f"s_xor_b32 {r}, {r}, {0 if self.opt.get('x_one') else SLOT}" if md == "f" else f"s_add_u32 {r}, {r}, {SLOT}"

    def reduce_ops(self, md, name):
        sp, rt = self.L("spin" + name), self.L("spun" + name)
        poll = f"buffer_load_dword {vPoll}, {vPollA}, {SRD_P}, 0 offen sc1"
        chk = f"v_cmp_gt_u32 vcc, {sCnt}, {vPoll}"
        pub = [I(f"v_mov_b32 {vChk}, {sCnt}"), I("s_waitcnt vmcnt(0)"),
               I(f"buffer_store_dword {vChk}, {vFlagA}, {SRD_P}, 0 offen {'' if md == 'f' else 'sc1'}")]
        ask = [I(poll, tag=("poll", 0))]
        got = [waitvm(("poll", 0)), I(chk), Block([f"s_cbranch_vccnz {sp}", rt + ":"], "J")]
        w = Seg(sp)
        w.raw(sp + ":", f"s_cmp_eq_u32 {sSpin}, 0", f"s_cbranch_scc1 {rt}", f"s_sub_u32 {sSpin}, {sSpin}, 1", poll, "s_waitcnt vmcnt(0)", chk,
              f"s_cbranch_vccnz {sp}", f"s_branch {rt}")
        self.slow.append(w)
        ld = lambda w, r, m, o=0: I(f"buffer_load_dword{w} {r}, {vLin}, {SRD_P}, {sPr if m < 4 else 's72'} offen offset:{(m & 3) * 1024 + o} sc1", tag=("rl", 0))
        lds = [I(f"s_add_u32 s72, {sPr}, 4096"), ld("x2", f"a[{LAND + 2}:{LAND + 3}]", 0, 8)]
        lds += [ld("x4", a4(LAND + 4 * m), m) for m in range(1, 8)]
        lds += [ld("x2", f"a[{LAND + 32}:{LAND + 33}]", 0), I(self.slot_step(sPr, md))]
        return pub, ask, got, lds

    def sum_mfmas(self):
        return [f"{MF} {self.RL(1 - (k & 1))}, {self.RL(2)}, {a4(LAND + 4 * k + 2)}, {'0' if k < 2 else self.RL(1 - (k & 1))}"
                for k in (0, 2, 4, 6, 1, 3, 5, 7)]

    def out_ops(self, pol):
        ot = self.RL(3)
        ops = [I(f"v_cvt_pk_bf16_f32 {el(ot, r)}, {el(self.RL(r >> 1), 2 * (r & 1))}, {el(self.RL(r >> 1), 2 * (r & 1) + 1)}") for r in (2, 3, 0, 1)]
        ops += [I(f"buffer_store_dwordx4 {ot}, {vOutA}, {SRD_O}, {sOutC} offen {pol}"),
                I(f"s_mov_b32 {sOutC}, {sOut}"), I(f"s_add_u32 {sOut}, {sOut}, 128")]
        ops[-3].heavy = self.opt.get("heavy", 4)
        return ops

    def oblock(self, s, rel, md, gate, ready, bars, ctmajor=False, final=False):
        xm = 8 if gate else 0
        nq = self.nq; gl = self.gl
        o = len(s.ms)
        if ctmajor: order = [(2 * hh + (h ^ (ct & 1)), ct) for hh in range(2) for ct in range(4) for h in range(2)]
        else: order = [(kq, ct) for kq in range(4) for ct in range(4)]
        for G, (kq, ct) in enumerate(order):
            hh = kq >> 1; h = kq & 1; p = G & 1; g0 = o + G * gl
            mine = [n for n, x in enumerate(order) if x[1] == ct]
            for t, ks in self.walk(G):
                a = self.ACC[ct][t]
                for n_, i in enumerate(ks):
                    b = self.O1(4 * h + i, t) if hh == 0 else self.O2(4 * h + i, t)
                    idx = s.m(f"{MF} {a}, {self.F[p][i]}, {b}, {'0' if (G == mine[0] and n_ == 0) else a}")
                if G == mine[1]:
                    by = o + mine[2] * gl - 3 + 4 * min(self.pos(mine[2], t), self.pos(G, t))
                    for r in range(4):
                        s.add("cv", f"v_mul_f32 {el(a, r)}, {el(a, r)}, {vL[t]}", after=idx + 6, by=by, dep=ready, prio=0.2)
                if G == 15 and final:
                    for x in self.o_finish(ct, t, rel, md): s.add("cv", x, after=idx + 6, by=min(idx + 10, o + 16 * gl + xm - 1), prio=0.2)
                if G == mine[3] and ct < 3:
                    for x in self.o_finish(ct, t, rel, md, self.opt.get("s0pol", "nt") if final else None):
                        if x.kind == "O": s.add("st", x, by=o + 16 * gl + xm - 2, dep=[it] + ([gate] if gate else []), prio=0.6)
                        else: it = s.add("cv", x, after=idx + 6, by=o + 16 * gl + xm - 2, prio=0.2)
            if rel == 3: self.stamp(s, g0, lv=(5,))
            if G == 15 and final: break
            tog = [f"v_xor_b32 {vWoA[0]}, 0x10000, {vWoA[0]}"] if G == 15 else []
            for a in vWoA[1:] if G == 15 else (): s.add("tg", f"v_xor_b32 {a}, 0x10000, {a}", after=g0, by=g0 + gl - 1)
            bar = bars.get(G >> 2) if G & 3 == 3 else None
            nkq, nct = order[(G + 1) & 15]
            self.reads(s, tog + self.rd_wo(nkq, nct, 1 - p), g0, bar=None if bar is None else rel + bar,
                       own=nq == 3 or (not self.opt.get("osolo", 1) if gate else (bar == 2 or not self.opt.get("esolo", 0))))
        if xm:
            for x in self.sum_mfmas(): s.m(x)
        for x in (f"s_mov_b32 {sWoOff}, {sWoN1}", f"s_mov_b32 {sWoN1}, {sWoN2}", f"s_xor_b32 {sWoM0}, {sWoM0}, 0x10000",
                  f"s_xor_b32 {sWoM1}, {sWoM1}, 0x10000") if not final else ():
            s.add("dma", x, after=o + 12 * gl, by=o + 16 * gl - 2, prio=-2)
        s.add("dma", f"s_add_u32 {sCnt}, {sCnt}, 1", after=o + 16 * gl - 3, by=o + 16 * gl - 1, prio=-2)
        self.stamp(s, lv=(1, 5, 6))

    def end(self, md):
        nq = self.nq; gl = self.gl
        s = Seg("end" + md)
        s.vsp = self.opt.get("vspe", 0)
        if md == "s": s.raw(self.L("oslow") + ":", f"s_add_u32 {sP}, {sP}, {2 * SLOT}", f"s_add_u32 {sPr}, {sPr}, {2 * SLOT}")
        else: s.raw(*self.align(), self.L("tail2") + ":", f"s_and_b32 s72, {sMode}, {'0' if self.opt.get('force_slow') else '0x88888888'}",
                    f"s_cbranch_scc0 {self.L('oslow')}")
        s.raw(*self.until(3))
        done, back = self.pv15(s, 1, 3)
        o = 12 * gl
        rdy = []
        for t in range(nq):
            for x in (f"v_rcp_f32 {vTS[t]}, {vL[t]}", f"v_mul_f32 {vL[t]}, {vL[t]}, {vL1[t]}"):
                it = s.add(f"ls{t}", x, by=o + 4 * gl, prio=0.3)
            rdy.append(it)
        for ks, t in [(ks, t) for ks in range(4) for t in range(nq)] + [(ks, t) for t in range(nq) for ks in range(4, 8)]:
            for x in self.o_convert(ks, t, self.O2(ks, t)):
                s.add("oc", x, after=done[(2 * ks + 1, t)] + 7, by=o + 8 * gl - 3 if ks < 4 else o + 12 * gl - 3 + 4 * t)
        for x in (f"v_bfe_u32 {vChk}, {vLin}, 4, 4", f"v_lshrrev_b32 {vOutA}, 8, {vLin}", f"v_mul_u32_u24 {vChk}, 1792, {vChk}",
                  f"v_lshl_add_u32 {vOutA}, {vOutA}, 4, {vChk}", f"v_bfe_u32 {vChk}, {vLin}, 4, 5", f"v_lshlrev_b32 {vChk}, 2, {vChk}"):
            s.add("ad", x, after=7 * gl + 1, prio=-1)
        s.add("ad", f"v_add_u32 {vPollA}, {FLAG0}, {vChk}", after=o + 3 * gl, prio=-1)
        for i in range(1, 4) if nq == 3 else (): s.add("a4", f"v_add_u32 {vD4kv[i - 1]}, {(7168 - 1024) * i}, {vDwo}", by=o - 2 * gl)
        for k in (1, 3): s.add("a4", f"v_xor_b32 {vWoA[k]}, 8, {vWoA[k - 1]}", after=3 * gl, by=o - 2)
        sel = self.RL(2); e = lambda r: el(sel, r)
        for x in (f"v_bfe_u32 {e(2)}, {vLin}, 5, 3", f"v_bfe_u32 {e(3)}, {vLin}, 8, 2", f"v_lshlrev_b32 {e(3)}, 1, {e(3)}", f"v_xor_b32 {e(2)}, {e(2)}, {e(3)}",
                  f"v_and_b32 {e(3)}, 16, {vLin}", f"v_mov_b32 {vChk}, 0x3f80", f"v_lshlrev_b32 {e(3)}, {e(3)}, {vChk}",
                  f"v_cmp_eq_u32 vcc, 0, {e(2)}", f"v_cmp_eq_u32 s[72:73], 1, {e(2)}", "v_nop", f"v_cndmask_b32 {e(0)}, 0, {e(3)}, vcc",
                  f"v_cndmask_b32 {e(1)}, 0, {e(3)}, s[72:73]", f"v_mov_b32 {e(2)}, {e(0)}", f"v_mov_b32 {e(3)}, {e(1)}"):
            s.add("ad", x, after=o + 13 * gl, prio=-1)
        for x in (f"s_mov_b32 {sCnt}, 0", f"s_add_u32 {sWoN1}, {sWoOff}, 128", f"s_add_u32 {sWoN2}, {sWoOff}, 256"):
            s.add("dma", x, by=o, prio=-2)
        if self.opt.get("warmat", "end") == "end": self.owarm(s, *self.opt.get("ospan", (0, 26)), k0=self.opt.get("n14", 7))
        if self.opt.get("prew") and md == "f":
            for x in (f"v_lshrrev_b32 {vDkv}, 7, {vLin}", f"v_min_u32 {vDkv}, {2 * nq - 1}, {vDkv}", f"v_lshlrev_b32 {vDkv}, 13, {vDkv}",
                      f"v_bfe_u32 {vC1}, {vLin}, 4, 3", f"v_lshl_add_u32 {vDkv}, {vC1}, 7, {vDkv}"):
                s.add("pw", x, by=gl)
            for k, a0 in enumerate(self.opt.get("prew")):
                s.add("pw", Pair(f"s_xor_b32 {sTmp}, {sP}, {k * SLOT}", f"buffer_store_dword {vLin}, {vDkv}, {SRD_P}, {sTmp} offen"), after=int(a0 * gl), by=int(a0 * gl) + gl)
        if self.opt.get("etouch", 1) and nq == 3:
            for x in self.code_touch(vC1): s.add("ct", x, after=4, by=2 * gl)
        look = self.opt.get("look", 6)
        plan = {6: [[3], [4, 5], [6, 7], [8, 9]], 5: [[3], [4, 5], [6], [7, 8]], 4: [[3], [4, 5], [6, 7], []]}[look]
        for kq, us in enumerate(plan):
            self.put_dma(s, [x for u in us for x in self.dma_wo(u, u + 3, self.opt.get("esolo", 0))], o + kq * 4 * gl - gl + 1,
                         o + kq * 4 * gl + (3 * gl if self.opt.get("esolo", 0) else 4 * gl - 7), step=int(gl * self.opt.get("estep", 0.5)), burst=3)
        self.oblock(s, 3, md, None, rdy, {4: {0: 2, 2: 3, 3: 7}, 6: {0: 2, 2: 3, 3: 5}, 5: {k: k + 1 for k in range(4)}}[look])
        return s

    def obody(self, md, upto=7, sfx="", pol="", final=False):
        nq = self.nq; gl = self.gl
        self.fpol = pol
        s = Seg("obody" + md + sfx)
        s.vsp = self.opt.get("vsp", 3) if nq == 4 else self.opt.get("vsp3", 1)
        lp = self.L("oloop" + md + sfx)
        if not final: s.raw(*self.align(), lp + ":")
        for n, (t, _) in enumerate(self.walk(15)):
            for x in self.o_finish(3, t, -4, md, self.opt.get("carrypol", "nt") if final else None):
                if x.kind == "O": last = s.add("st", x, by=2 * gl - 3, dep=[it], prio=0.6)
                else: it = s.add("cv", x, after=max(0, 4 * n + 3 + 6 - gl), by=2 * gl - 3, prio=0.5)
        s.add("st", self.slot_step(sP, md), prio=-2)
        pub, ask, got, lds = self.reduce_ops(md, md + sfx)
        gp, ga, gg, gs = [int(x * gl) for x in (self.opt.get("rsched", (3.5, 7.5, 9.3, 12)) if nq == 4 else self.opt.get("rsched3", (3.7, 8, 9.7, 13)))]
        if final:
            sh = self.opt.get("fshift", (0, 0, 0))
            gp, ga, gg = gp + int(sh[0] * gl), ga + int(sh[1] * gl), gg + int(sh[2] * gl)
        gstep = self.opt.get("gstep", 2)
        for x in pub: pubd = s.add("rd", x, after=gp - (4 if x.kind == "V" else 0), by=gp + gl // 2, dep=[last], prio=1)
        for x in ask: asked = s.add("rd", x, after=ga, by=ga + gl // 2, prio=1)
        s.add("rd", got[0], after=gg, by=gg + 2, prio=1)
        c = s.add("rd", got[1], after=gg, by=gg + 2, prio=1)
        gate = s.add("rd", got[2], after=gg, by=gg + gl // 2, prio=1, dep=[c], lag=2)
        go = int(self.opt.get("gout", 6) * gl)
        for x in self.out_ops(self.opt.get("opol", "nt")):
            s.add("rd2", x, after=go if x.kind == "O" else 4, by=gg, prio=2 if x.kind == "O" else 0, dep=[pubd] if x.kind == "O" else None,
                  ok=(lambda g: g % gl >= gl - 3) if x.kind == "O" else None)
        ld = []
        for x in lds:
            dep = ld[-1:] if x.kind == "G" else None
            lastld = s.add("rd", x, after=gg, by=14 * gl, prio=1, dep=dep, lag=gstep if dep else 0)
            if x.kind == "G": ld.append(lastld)
        s.add("rd3", waitvm(("rl", 0)), after=16 * gl - 2, by=16 * gl - 1, dep=[ld[-1]])
        if not final:
            s.add("dma", f"s_add_u32 {sTmp2}, {sWoN1}, 128")
            s.add("dma", Block([f"s_cmp_lt_u32 {sCnt}, 5", f"s_cselect_b32 {sWoN2}, {sTmp2}, {OOB}"]))
        pos = self.opt.get("dpos", (3.5, 3.7, 4.3, 4.5, 4.7, 5.3, 5.5, 5.7, 7.5, 7.7, 8.3, 8.5, 8.7, 9.3, 11.5, 12.3))
        look = self.opt.get("look", 6)
        so = self.opt.get("osolo", 1)
        dl = [x for u in range(look, look + 4) for x in self.dma_wo(u, u, so)]
        if so and dl and not final:
            w1, w2 = self.opt.get("owin", ((3.9, 7.0), (8.2, 15.5)))
            for part, (a, b), dep in ((dl[:40], w1, pubd), (dl[40:], w2, asked)):
                k = 0
                for x in part:
                    t_ = int((a + (b - a) * k / 32) * gl)
                    s.add("dma", x, after=t_ if x.kind == "D" else 0, by=t_, prio=1.5, tight=True, dep=[dep] if (k == 0 and x.kind == "D") else None)
                    k += x.kind == "D"
        for k in range(0 if (final or so) else 16):
            a = int(pos[k] * gl)
            assert a >= (look + (k >> 2) - 7) * 4 * gl and (look != 6 or k < 8 or a > 7 * gl)
            late = pos[k] >= self.opt.get("dsplit", 7)
            dep = [asked] if late else [pubd]
            m0 = s.add("dma", dl[2 * k], by=16 * gl - 8, prio=-2)
            s.add("dma", dl[2 * k + 1], after=a, by=(max(a + gl, 12 * gl) if look == 4 else 16 * gl - 8) if late else ga - 1, prio=1, dep=[m0] + (dep or []), lag=1 if nq == 4 else 0)
        if self.opt.get("otouch", 4) and nq == 3 and not final:
            sk = self.L("notouch" + md + sfx)
            s.add("ct", Block([f"s_cmp_eq_u32 {sCnt}, {self.opt.get('otouch', 4)}", f"s_cbranch_scc0 {sk}"] + self.code_touch(vC1) + [sk + ":"], "J"),
                  after=11 * gl + gl // 2, by=12 * gl + gl // 2)
        self.oblock(s, 0, md, gate, None, {4: {3: 7}, 6: {1: 3, 3: 5}, 5: {k: k + 1 for k in range(4)}}[look],
                    ctmajor=look != 5 and (final or self.opt.get("ctmajor", 1)), final=final)
        if upto == 6 and md == "f" and self.opt.get("fork", 1):
            a = 13 * gl + gl // 2 + 1
            s.fork = Block([f"s_cmp_eq_u32 {sCnt}, 5", f"s_cbranch_scc1 {self.L('ofork')}"], "J")
            fk = s.add("fk", s.fork, after=a, by=a + 2, prio=3)
            for it in s.streams["st"][-nq:]: it.dep.append(fk)
            s.raw(f"s_branch {lp}")
        elif not final: s.raw(f"s_cmp_lt_u32 {sCnt}, {upto}", f"s_cbranch_scc1 {lp}")
        return s

    def otail(self, md, merged=False):
        s = Seg("otail" + md)
        if self.opt.get("x_burn"):
            lb = self.L("burn" + md)
            s.raw("s_nop 7", "s_mov_b32 s73, 0", lb + ":")
            for k in range(64):
                s.pre.append(I(f"{MF} {self.ACC[1][(k >> 2) % self.nq]}, {self.O1(k % 8, (k >> 3) % self.nq)}, {self.O2((k * 3) % 8, k % self.nq)}, {self.ACC[1][(k >> 2) % self.nq]}"))
            s.raw("s_add_u32 s73, s73, 1", f"s_cmp_lt_u32 s73, {self.opt.get('x_burn')}", f"s_cbranch_scc1 {lb}")
        assert merged
        pub, ask, got, lds = self.reduce_ops(md, "t" + md)
        st6 = lambda: self.stamp(s, lv=(6,))
        prev = self.out_ops(self.opt.get("opol", "nt"))
        st6(); s.raw(f"s_bfe_u32 s73, {sPr}, 0x20010", "s_lshl_b32 s73, s73, 2", f"s_add_u32 s73, s73, {FLAG0}",
                     f"v_and_b32 {vPollA}, 0x70, {vLin}", f"v_add_u32 {vPollA}, s73, {vPollA}", *prev[:4])
        st6(); s.raw(*pub); st6(); s.raw(*ask); s.raw(*got); st6()
        s.raw(*lds); st6(); s.raw(*prev[4:]); st6(); s.raw(waitvm(("rl", 0))); st6()
        s.pre += [I(x) for x in self.sum_mfmas()]
        s.raw(*self.out_ops(self.opt.get("lastpol", "nt"))[:5])
        st6()
        s.raw(*self.until(4))
        if self.opt.get("stamp"):
            s.raw("s_waitcnt vmcnt(0)"); self.stamp(s, lv=(1, 2, 3, 4, 5, 6))
            s.raw(f"v_lshrrev_b32 v0, 1, {vLin}", f"buffer_store_dwordx2 v[18:19], v0, s[76:79], 0 offen")
        s.raw("s_endpgm")
        return s

    def build(self, pro):
        gl = self.gl
        q = Seg("front")
        free0 = self.qproj(q)
        self.head_start(q, "front", 32, free0)
        lp = self.L("loop"); t2 = self.L("tail2")
        def piece(name, j, d, label=None, **kw):
            s = Seg(name)
            if label: s.raw(*self.align(), label + ":")
            self.it(s, name, j, 0, *d, **kw)
            return s
        l0 = piece("lp0", 2, self.reg_dma(2, 0), label=lp)
        l1 = piece("lp1", 3, self.reg_dma(3, 0), tail=[f"s_add_u32 {sCnt}, {sCnt}, 1", f"s_cmp_lt_u32 {sCnt}, 6", f"s_cbranch_scc1 {lp}"])
        if self.opt.get("retouch", 1) and self.nq == 3:
            sk = self.L("notouch")
            ops = [f"s_cmp_eq_u32 {sCnt}, {self.opt.get('retouch', 4)}", f"s_cbranch_scc0 {sk}"] + self.code_touch()
            l0.add("ct", Block(ops + [sk + ":"], "J"), after=5, by=gl - 2)
        i14 = piece("it14", 14, (self.dma_kv("V", 3, 4), []),
                    tail=[f"s_cmp_eq_u32 {sHead}, 1", f"s_cbranch_scc1 {t2}"])
        if self.opt.get("n14", 7): self.owarm(i14, 0, 7, k1=self.opt.get("n14", 7))
        md = self.mid()
        nb = self.opt.get("ntfrom", 6)
        of = [self.end("f"), self.obody("f", nb)] + ([self.obody("f", 7, "b", "nt", final=nb == 6)] if nb < 7 else []) + [self.otail("f", nb == 6)]
        os_ = [self.end("s"), self.obody("s", nb)] + ([self.obody("s", 7, "b", final=nb == 6)] if nb < 7 else []) + [self.otail("s", nb == 6)]
        self.slowpath(0, False); self.slowpath(1, False); self.slowpath(0, True)
        main = [q, l0, l1, i14, md] + of + os_
        static = main + self.slow
        for s in static:
            if self.nq == 3 and s.name == "front" and self.opt.get("capq", 0):
                s.cap = lambda g_: 20 if (20 * gl <= g_ < 31 * gl or 33 * gl <= g_ < 45 * gl or 52 * gl <= g_ < 59 * gl) else 16
            if self.nq == 3 and s.name[:3] == "end" and self.opt.get("cape", 1):
                s.cap = lambda g_: 20 if 8 * gl <= g_ < 23 * gl else 16
            if self.nq == 3 and s.name == "mid" and self.opt.get("capm", 0):
                s.cap = lambda g_: 20 if 7 * gl < g_ < 19 * gl else 16
            s.schedule()
            if self.opt.get("relax", 1): relax_lds_waits(s, gl)
        front = [(pro, 0), (q, 0)]
        for hd in range(2):
            J = 32 + 32 * hd
            for j in range(2, 14): front.append(([l0, l1][j % 2], J + 2 * j - 1))
            front.append((i14, J + 27))
            if hd == 0: front.append((md, J + 29))
        vb = self.opt.get("verbose", True)
        for oo in (os_, of):
            trace = front + [(oo[0], 93)] + [(oo[1] if c < nb else oo[-2], 96 + 4 * c) for c in range(1, 7)] + [(oo[-1], 124)]
            resolve_vmcnt(trace)
            check_hazards(trace, vb); check_hazards(trace, vb)
            check_pending(trace, junk=[("v", 20)])
        for s in self.slow: check_hazards([(s, 0)], False)
        if vb:
            for s in main: print(f"  seg {s.name}: M={len(s.ms)} over={s.over} extra={s.extra} cycles={s.cycles}")
            for s in main:
                if self.nq == self.opt.get("mapnq", 4) and s.name in self.opt.get("map", ""): gapmap(s, gl, *self.opt.get("maprange", (0, None)))
            for s in main:
                if s.name in self.opt.get("ivl", ""): print("  ivl", s.name, intervals(s))
            print(f"  nq={self.nq} model cycles {sum(s.cycles for s, _ in trace)}")
        out = []
        for s in static:
            out += [x.out() for x in s.code]
            if hasattr(s, "fork"):
                rest = s.code[s.code.index(s.fork) + 1:-1]
                assert not any(":" == ln[-1:] for x in rest for ln in x.out().split("\n"))
                out += self.align() + [self.L("ofork") + ":"] + [x.out() + (" " + self.opt.get("forkpol", "nt") if x.tag and x.tag[0] == "pst" else "") for x in rest] + ["s_nop 0"]
        return "\n".join(out) + "\n"


def srd(n, ptr, off, size):
    return [f"s_add_u32 s{n}, s{ptr}, {off}", f"s_addc_u32 s{n + 1}, s{ptr + 1}, 0", f"s_and_b32 s{n + 1}, s{n + 1}, 0xffff",
            f"s_mov_b32 s{n + 2}, {size}", f"s_mov_b32 s{n + 3}, 0x20000"]

sG, sHp, sBr, sB = "s76", "s77", "s78", "s79"

def prologue(opt):
    s = Seg("pro")
    R = s.raw
    R("s_cmp_ge_u32 s2, 256", "s_cbranch_scc1 L_exit")
    if opt.get("stamp") or opt.get("x_at"): R("s_memtime s[100:101]", "s_memrealtime s[88:89]")
    R(f"s_bfe_u32 {sBr}, s2, 0x10002", f"s_mul_i32 s72, {sBr}, 40", "s_add_u32 s72, s0, s72", "s_addc_u32 s73, s1, 0",
      "s_load_dwordx8 s[60:67], s[72:73], 0")
    R(f"s_getpc_b64 {sCode}", f"s_lshr_b32 {sCodeOff}, s2, 3", f"s_and_b32 {sHp}, {sCodeOff}, 7", f"s_lshl_b32 {sCodeOff}, {sCodeOff}, 13",
      "v_lshrrev_b32 v39, 6, v0", "v_lshrrev_b32 v41, 2, v0", f"v_readfirstlane_b32 {sW}, v39",
      f"v_lshl_add_u32 v41, v41, 7, {sCodeOff}", "v_min_u32 v41, L_end-L_main4, v41", f"global_load_dword {vJunk}, v41, {sCode}")
    R("v_bfe_u32 v24, v0, 3, 3", "v_and_b32 v25, 7, v0", "v_bfe_u32 v26, v0, 4, 2")
    R("v_and_b32 v27, 1, v26", "v_lshlrev_b32 v27, 2, v27", "v_xor_b32 v27, v27, v25", "v_lshlrev_b32 v27, 4, v27", f"v_lshl_add_u32 {vDwq}, v24, 13, v27")
    R(f"s_lshl_b32 {sW2K}, {sW}, 11", f"s_lshl_b32 {sWqOff2}, {sW}, 17", f"s_cmp_eq_u32 {sHp}, 7", f"s_cselect_b32 {sTab[0]}, 0, {sHp}",
      f"s_lshl_b32 {sTab[0]}, {sTab[0]}, 19", f"s_add_u32 {sWqOff2}, {sWqOff2}, {sTab[0]}", f"s_lshl_b32 s75, {sHp}, 10",
      "s_sub_u32 s10, 3670016, s75", "s_mov_b32 s11, 0x20000", "s_waitcnt lgkmcnt(0)",
      "s_add_u32 s8, s66, s75", "s_addc_u32 s9, s67, 0", "s_and_b32 s9, s9, 0xffff")
    g3 = Gen(3, "p", opt)
    R(*g3.dma_wq(0, 0))
    R("s_load_dwordx2 s[68:69], s[72:73], 32", "s_load_dwordx2 s[70:71], s[0:1], 96", "s_load_dwordx4 s[84:87], s[0:1], 80")
    R(f"s_and_b32 {sG}, s2, 7", "s_lshr_b32 s74, s2, 6", f"s_lshl2_add_u32 {sG}, {sG}, s74", f"s_and_b32 {sB}, {sG}, 15",
      f"s_mul_i32 s74, {sB}, 215040", *srd(4, 60, "s74", 215040), f"s_mul_i32 {sXst}, {sW}, 24576", f"s_add_u32 {sXst}, {sXst}, {PARK0}")
    R("v_lshlrev_b32 v37, 1, v26", "v_xor_b32 v37, v37, v25", "v_lshlrev_b32 v37, 4, v37",
      "v_lshl_add_u32 v36, v39, 6, v24", "v_mul_u32_u24 v36, 896, v36", f"v_add_u32 {vDx}, v36, v37")
    R(*g3.xdma(0))
    R(f"s_cmp_eq_u32 {sW}, 3", "s_cbranch_scc1 L_main3")
    s.schedule()
    return s


def late_setup(opt):
    out = []
    R = lambda *a: out.extend(a)
    R("v_and_b32 v0, 63, v0", f"v_lshlrev_b32 {vLin}, 4, v0", f"v_lshl_add_u32 {vDkv}, v24, 9, v37", f"s_lshl_b32 {sW4K}, {sW}, 12")
    if opt.get("stamp"):
        R("s_mov_b32 s82, 1", "v_mov_b32 v18, 0", "v_mov_b32 v19, 0", "v_writelane_b32 v18, s100, 0", "v_writelane_b32 v19, s88, 0")
    R("v_mul_u32_u24 v28, 896, v24", f"v_add_u32 {vDwo}, v28, v27")
    R("v_and_b32 v28, 15, v0", "v_bfe_u32 v29, v0, 2, 2", "v_and_b32 v30, 3, v0")
    R("v_lshrrev_b32 v31, 3, v28", "v_and_b32 v32, 7, v28", "v_lshlrev_b32 v32, 7, v32", "v_and_b32 v33, 6, v28", "v_xor_b32 v33, v33, v26",
      "v_lshl_add_u32 v32, v33, 4, v32", f"v_lshl_add_u32 {vKa[0]}, v31, 12, v32", f"v_xor_b32 {vKa[1]}, 64, {vKa[0]}",
      "v_lshl_add_u32 v32, v31, 10, v32", f"v_add_u32 {vXa[0]}, {sXst}, v32", f"v_xor_b32 {vXa[1]}, 64, {vXa[0]}")
    R("v_lshrrev_b32 v31, 1, v26", "v_and_b32 v32, 1, v26", "v_lshl_add_u32 v33, v32, 2, v29")
    R("v_lshlrev_b32 v34, 12, v31", "v_lshl_add_u32 v34, v33, 7, v34", "v_lshl_add_u32 v34, v30, 3, v34")
    R("v_lshrrev_b32 v35, 1, v33", f"v_lshl_add_u32 {vVa[0]}, v35, 5, v34")
    for c in range(1, 4): R(f"v_xor_b32 {vVa[c]}, {32 * c}, {vVa[0]}")
    R("v_lshrrev_b32 v35, 1, v29", "v_lshl_add_u32 v35, v35, 2, v30", "v_lshlrev_b32 v35, 4, v35")
    R("v_lshl_add_u32 v36, v26, 10, v35", f"v_lshl_add_u32 {vWqA[0]}, v29, 7, v36", f"v_xor_b32 {vWqA[1]}, 64, {vWqA[0]}")
    R("v_lshl_add_u32 v36, v31, 10, v35", "v_lshl_add_u32 v36, v33, 7, v36", f"s_and_b32 s74, {sHp}, 1", f"v_lshl_add_u32 {vWoA[0]}, s74, 3, v36",
      f"v_xor_b32 {vWoA[2]}, 64, {vWoA[0]}")
    R(f"v_lshl_add_u32 v36, v39, 15, {vLin}", f"v_add_u32 {vPark}, {PARK0}, v36")
    thr = opt.get("thr", 2.0 ** 40)
    R(f"s_mul_i32 {sWoOff}, {sW}, {4 * 7168}", f"s_mov_b32 {sKoff}, {-4096 if opt.get('solo', 1) else sW4K}", f"s_mov_b32 {sVoff}, {-4096 if opt.get('solo', 1) else sW4K}", f"s_mov_b32 {sKcur}, 0",
      f"s_mov_b32 {sThr}, {f32hex(thr)}", f"s_mov_b32 {sThrLo}, {f32hex(opt.get('thrlo', 2.0 ** -40))}",
      f"s_mov_b32 {sScale}, {f32hex(math.log2(math.e) / 16)}",
      f"s_lshl_b32 {sP}, {sW}, 16", f"s_add_u32 {sP}, {sP}, s75",
      f"s_mov_b32 {sCnt}, 0", f"s_mov_b32 {sHead}, 0", f"s_mov_b32 {sWoM0}, {sW4K}", f"s_add_u32 {sWoM1}, {sW4K}, 0x10000",
      f"s_mov_b32 {sOutC}, {OOB}", f"s_mov_b32 {sSpin}, 0x40000")
    tab = lambda c: (f"s_add_u32 {sTab[c]}, {sTab[c - 1]}, {1 << 19}", f"s_cmp_eq_u32 {sTab[c]}, {7 << 19}", f"s_cselect_b32 {sTab[c]}, 0, {sTab[c]}")
    R(*tab(1))
    early = out; out = ["s_waitcnt lgkmcnt(0)"]
    R(f"s_lshl_b32 s72, {sB}, 22", f"s_lshl_b32 s73, {sHp}, 19", "s_add_u32 s72, s72, s73")
    R(*srd(12, 62, "s72", 524288)); R(*srd(16, 64, "s72", 524288))
    R(f"s_mul_i32 s72, {sHp}, 458752"); R(*srd(20, 68, "s72", 458752))
    R(f"s_mul_i32 s72, {sG}, {opt.get('gstride', 2658304)}"); R(*srd(28, 70, "s72", 10 * SLOT))
    R(*srd(92, 84, 0, 3840 * 1792)); R(*srd(96, 86, 0, 256))
    R(f"s_lshl_b32 s72, {sHp}, 2", f"s_add_u32 s72, s72, {sW}")
    R(f"s_lshl_b32 {sPr}, s72, 13", "s_lshr_b32 s73, s72, 1", f"s_mul_i32 s74, {sB}, 15", "s_add_u32 s73, s73, s74", f"s_mul_i32 s73, s73, {16 * 1792}",
      f"s_mul_i32 s74, {sBr}, 896", "s_add_u32 s73, s73, s74", "s_and_b32 s74, s72, 1", "s_lshl_b32 s74, s74, 6", f"s_add_u32 {sOut}, s73, s74",
      "s_cmp_lt_u32 s72, 30", f"s_cselect_b32 {sPr}, {sPr}, {OOB}", f"s_cselect_b32 {sOut}, {sOut}, {OOB}")
    R("s_lshl_b32 s72, s72, 2", f"s_add_u32 s72, s72, {FLAG0}", "v_min_u32 v41, 1, v0", f"v_lshl_add_u32 {vFlagA}, v41, 30, s72")
    R(f"s_mul_i32 {sWarm}, {sB}, 28672", f"s_lshl_b32 {sPw}, {sHp}, 15")
    R(f"s_lshl_b32 {sClr}, {sHp}, 4", f"s_add_u32 {sClr}, {sClr}, {FLAG0}", f"s_lshl_b32 {sDbgOff}, {sG}, 2",
      "s_getreg_b32 s72, hwreg(HW_REG_XCC_ID, 0, 3)", "s_lshl_b32 s72, s72, 2", f"s_lshl_b32 {sXccBit}, 1, s72")
    if opt.get("x_nostore"): R(f"s_mov_b32 {sP}, {OOB}")
    if opt.get("x_noout"): R(f"s_mov_b32 {sOut}, {OOB}")
    if opt.get("tlb", 0):
        R("v_lshlrev_b32 v41, 30, v41", f"s_lshl_b32 s72, {sW}, 17", f"s_mul_i32 s73, {sW}, 114688")
        for sr, so in ((SRD_K, "s72"), (SRD_V, "s72"), (SRD_WO, "s73"), (SRD_P, "s72"), (SRD_O, sOut)):
            R(f"buffer_load_dword {vJunk}, v41, {sr}, {so} offen")
        R(f"s_mov_b32 s72, {FLAG0 + 4096}", f"buffer_load_dword {vJunk}, v41, {SRD_P}, s72 offen")
    if opt.get("stamp"):
        R("s_lshl_b32 s72, s2, 2", f"s_add_u32 s72, s72, {sW}", "s_lshl_b32 s72, s72, 9", f"s_add_u32 s72, s72, {200 << 20}")
        R(*srd(76, 70, "s72", 512))
    for c in range(2, 7): R(*tab(c))
    R(f"s_and_b32 s72, {sW}, 1", "s_lshl_b32 s72, s72, 18", f"s_cmp_lt_u32 {sW}, 2")
    for kq in range(1, 4): R(f"s_cselect_b32 {sWqK[kq]}, {sTab[2 * kq - 1]}, {sTab[2 * kq]}")
    R(f"s_cselect_b32 s85, {sTab[0]}, {sTab[1]}", "s_add_u32 s85, s85, s72")
    for kq in range(1, 4): R(f"s_add_u32 {sWqK[kq]}, {sWqK[kq]}, s72")
    return early, out


def kd(name, vgpr, acc, sgpr):
    return (f".amdhsa_kernel {name}\n  .amdhsa_next_free_vgpr {vgpr}\n  .amdhsa_next_free_sgpr {sgpr}\n  .amdhsa_accum_offset {acc}\n"
            "  .amdhsa_group_segment_fixed_size 0\n  .amdhsa_kernarg_size 104\n  .amdhsa_user_sgpr_count 2\n"
            "  .amdhsa_user_sgpr_kernarg_segment_ptr 1\n  .amdhsa_system_sgpr_workgroup_id_x 1\n.end_amdhsa_kernel\n")


HEADER = """; Fused  Q-projection -> attention -> output projection -> head reduction  for both branches in one launch.
; (Generated by a scheduling script; registers and offsets are static.)
;
; from one MFMA to the next without shuffles. LDS: a 4 x 16 KB ring of streamed operands plus 96 KB that parks Q of
; the second head during the first head and O of the first head during the second.
;
; Softmax: scores are exponentiated against a per-row reference value (added through the MFMA accumulator). After
; every key tile the tile sums are range-checked (both ways on a head's first tile); whenever a sum leaves
;
; blocks, ordered by per-wave flags that are cleared at the start of the launch and counted in d_debug. The same
; counter records the die of every member: if all eight share an L2 the exchange stays in that L2, otherwise all
; payload and flag stores are written through to memory and no buffer is reused.
"""

MACROS = """.macro mf d, a, b
v_mfma_f32_16x16x32_bf16 \\d, \\a, \\b, \\d
.endm
.macro mz d, a, b, c
v_mfma_f32_16x16x32_bf16 \\d, \\a, \\b, \\c
.endm
.macro cv d, a, b
v_cvt_pk_bf16_f32 \\d, \\a, \\b
.endm
.macro ar d, a
v_accvgpr_read_b32 \\d, \\a
.endm
.macro aw d, a
v_accvgpr_write_b32 \\d, \\a
.endm
.macro wl
s_waitcnt lgkmcnt(0)
.endm
.macro tr d, a, o
ds_read_b64_tr_b16 \\d, \\a offset:\\o
.endm
"""

def compact(txt):
    out = []
    for ln in txt.split("\n"):
        m = re.match(r"v_mfma_f32_16x16x32_bf16 (\S+), (\S+), (\S+), (\S+)$", ln)
        if m and m.group(1) == m.group(4):
            ln = f"mf {m.group(1)},{m.group(2)},{m.group(3)}"
        for a, b in (("v_mfma_f32_16x16x32_bf16 ", "mz "), ("v_cvt_pk_bf16_f32 ", "cv "), ("v_accvgpr_read_b32 ", "ar "), ("v_accvgpr_write_b32 ", "aw ")):
            if ln.startswith(a): ln = b + ln[len(a):].replace(", ", ",")
        if ln == "s_waitcnt lgkmcnt(0)": ln = "wl"
        m = re.match(r"ds_read_b64_tr_b16 (\S+), (\S+) offset:(\d+)$", ln)
        if m: ln = f"tr {m.group(1)},{m.group(2)},{m.group(3)}"
        out.append(ln.rstrip())
    return "\n".join(out)


def generate(opt):
    k1 = NAME + "_kernel"
    out = "; @launch grid=(256,1,1) block=(256,1,1) lds=163840\n" + HEADER
    out += '.amdgcn_target "amdgcn-amd-amdhsa--gfx950"\n' + MACROS + ".text\n"
    out += f".globl {k1}\n.p2align 8\n.type {k1},@function\n{k1}:\n"
    pro = prologue(opt)
    a = compact(Gen(4, "a", opt).build(pro)); b = compact(Gen(3, "b", opt).build(pro))
    out += "\n".join(x.out() for x in pro.code) + "\nL_main4:\n" + a + "L_exit:\ns_endpgm\n.p2align 5\nL_main3:\n" + b
    out += "L_end:\ns_endpgm\n"
    out += '.section .rodata,"a"\n.p2align 6\n' + kd(k1, 512, 256, 102)
    return out


if __name__ == "__main__":
    opt = {}
    path = f"cdna_kernels/{NAME}.s"
    for a in sys.argv[1:]:
        k, _, v = a.partition("=")
        if k == "out": path = v
        elif k.endswith("pol") or k in ("kvp", "kvl", "warmat"): opt[k] = v.replace("+", " ")
        else: opt[k] = eval(v.replace(":", ",")) if v else True
    txt = generate(opt)
    if opt.get("x_nobar"): txt = txt.replace("s_barrier", "s_nop 0")
    if opt.get("x_nolgkm"):
        head, body = txt.split("L_main4:\n")
        body = re.sub(r"(?<!s\[80:81\]\n)s_waitcnt lgkmcnt\(0\)", "s_nop 0", body)
        txt = head + "L_main4:\n" + body
    if opt.get("x_noconf"): txt = txt.replace("v_lshlrev_b32 v35, 4, v35", "v_lshlrev_b32 v35, 3, v35\nv_and_b32 v37, 1, v26\nv_lshl_add_u32 v35, v37, 6, v35")
    if opt.get("x_nored"):
        a_, b_ = txt.split("Loloopf_a:"); b_, c_ = b_.split("Lspuntf_a:", 1)
        b_ = re.sub(r"m[fz] v\[2(08|12):\d+\],v\[216:219\].*\n", "", b_)
        b_ = re.sub(r"buffer_load_dwordx[24] a\[.*\n", "s_nop 0\n", b_)
        b_ = re.sub(r"buffer_store_dwordx4 .*s\[92:95\].*\n", "s_nop 0\n", b_)
        txt = a_ + "Loloopf_a:" + b_ + "Lspuntf_a:" + c_
    if opt.get("x_noadd"): txt = re.sub(r"v_add_f32 v(28|29|30|31), v\d+, v(28|29|30|31)\n", "", txt)
    if opt.get("x_nomul"): txt = re.sub(r"v_mul_f32 v\d+, v\d+, v(24|25|26|27|28|29|30|31)\n", "", txt)
    if opt.get("x_halft"): txt = re.sub(r"tr a\[\d+:\d*[37]\],.*\n", "", txt)
    if opt.get("x_nost"): txt = re.sub(r"buffer_store_dwordx4 .*s\[28:31\].*", "s_nop 0", txt)
    if opt.get("x_noout2"): txt = re.sub(r"buffer_store_dwordx4 .*s\[92:95\].*", "s_nop 0", txt)
    if opt.get("x_nold"): txt = re.sub(r"buffer_load_dwordx4 v\[.*s\[28:31\].*", "s_nop 0", txt)
    if opt.get("x_nospin"): txt = re.sub(r"s_cbranch_vccnz Lspin.*", "s_nop 0", txt)
    if opt.get("x_novm"):
        a_, b_ = txt.split("Loloopf_a:"); b_, c_ = b_.split("s_cbranch_scc1 Loloopf_a")
        txt = a_ + "Loloopf_a:" + re.sub(r"s_waitcnt vmcnt.*", "s_nop 0", b_) + "s_cbranch_scc1 Loloopf_a" + c_
        a_, b_ = txt.split("Loloopf_b:"); b_, c_ = b_.split("s_cbranch_scc1 Loloopf_b")
        txt = a_ + "Loloopf_b:" + re.sub(r"s_waitcnt vmcnt.*", "s_nop 0", b_) + "s_cbranch_scc1 Loloopf_b" + c_
    if opt.get("x_nodma"): txt = re.sub(r"buffer_load_dwordx4 .* lds", "s_nop 0", txt)
    open(path, "w").write(txt)
    print("wrote", path, len(txt), "bytes")
```
